```python
import torch

def _softmax(x, axis=-1):
    return torch.softmax(x, dim=axis)
def _gelu(x):
    return torch.nn.functional.gelu(x, approximate="tanh")
def _silu(x):
    return torch.nn.functional.silu(x)
def _sigmoid(x):
    return torch.sigmoid(x)
def _layernorm(x, axis=-1, eps=1e-5):
    m = x.mean(dim=axis, keepdim=True)
    v = x.var(dim=axis, keepdim=True, unbiased=False)
    return (x - m) / torch.sqrt(v + eps)
def _scatter_add(tgt, idx, src, axis=0):
    return tgt.clone().index_add_(axis, idx, src)
def _segment_sum(src, seg, n):
    out = torch.zeros((n,) + src.shape[1:], dtype=src.dtype)
    return out.index_add_(0, seg, src)
def _pad(x, pw):
    flat = tuple(v for pair in reversed(pw) for v in pair)
    return torch.nn.functional.pad(x, flat)

kernel_name = 'standalone__deformable_dcnv1__vision'

def setup_inputs():

    _w = (lambda a: (lambda t: t.to(torch.bfloat16) if t.is_floating_point() else t)(torch.as_tensor(a)))
    H = W = 224
    C = 96
    K = 5
    return {
        "x": _w((lambda *s: torch.randn(*s, dtype=torch.bfloat16) * 0.05)(1, H, W, C)),
        "offset": _w((lambda *s: torch.randn(*s, dtype=torch.bfloat16) * 0.05)(1, H, W, 2 * K * K) * 0.5),
        "w": _w((lambda *s: torch.randn(*s, dtype=torch.bfloat16) * 0.05)(K, K, C, C) * (K * K * C) ** -0.5),
    }

def reference(x, offset, w):
    B, H, W, C = x.shape
    K = 5
    hh = (lambda x, dt: x.to(dt))(torch.arange(H), x.dtype).reshape(1, H, 1)
    ww = (lambda x, dt: x.to(dt))(torch.arange(W), x.dtype).reshape(1, 1, W)
    xf = x.reshape(B, H * W, C)
    def _gather(yi, xi):
        lin = (yi * W + xi).reshape(B, H * W)
        idx = (lambda x, n, axis: torch.repeat_interleave(x, n, dim=axis))(lin[..., None], C, axis=-1)
        return (lambda x, i, axis: torch.take_along_dim(x, i, dim=axis))(xf, idx, axis=1).reshape(B, H, W, C)
    taps = []
    for ki in range(K):
        for kj in range(K):
            t = ki * K + kj
            dy = offset[..., 2 * t]
            dx = offset[..., 2 * t + 1]
            py = torch.clip(hh + (ki - 0.5 * (K - 1)) + dy, 0.0, H - 1.0)
            px = torch.clip(ww + (kj - 0.5 * (K - 1)) + dx, 0.0, W - 1.0)
            y0 = torch.floor(py)
            x0 = torch.floor(px)
            y1 = torch.clip(y0 + 1.0, 0.0, H - 1.0)
            x1 = torch.clip(x0 + 1.0, 0.0, W - 1.0)
            wy = (py - y0)[..., None]
            wx = (px - x0)[..., None]
            y0i = (lambda x, dt: x.to(dt))(y0, torch.int64)
            y1i = (lambda x, dt: x.to(dt))(y1, torch.int64)
            x0i = (lambda x, dt: x.to(dt))(x0, torch.int64)
            x1i = (lambda x, dt: x.to(dt))(x1, torch.int64)
            v = (1 - wy) * (1 - wx) * _gather(y0i, x0i) + (1 - wy) * wx * _gather(y0i, x1i) + wy * (1 - wx) * _gather(y1i, x0i) + wy * wx * _gather(y1i, x1i)
            taps.append(v)
    samp = torch.stack(taps, 3)
    return torch.einsum("bhwkc,kco->bhwo", samp, w.reshape(K * K, C, C))
```

```python
import re

class I:
    __slots__ = ("t", "k", "rd", "wr", "after", "ld", "dpp", "srcc", "note", "need", "give")
    def __init__(self, t, k, rd=(), wr=(), after=None, ld=False, dpp=False, srcc=(), note=None):
        self.t = t; self.k = k
        self.rd = set(rd); self.wr = set(wr)
        self.after = after
        self.ld = ld
        self.dpp = dpp
        self.srcc = set(srcc)
        self.note = note
        self.need = set(); self.give = set()
    def N(self, *tok):
        self.need.update(tok); return self
    def G(self, *tok):
        self.give.update(tok); return self
    def __repr__(self):
        return self.t

def R(a, n=1):
    return list(range(a, a + n))
def vr(a, n):
    return "v%d" % a if n == 1 else "v[%d:%d]" % (a, a + n - 1)

def mfma(d, a, b, c=None):
    cs = "0" if c is None else vr(c, 4)
    rd = R(a, 4) + R(b, 4) + ([] if c is None else R(c, 4))
    return I("v_mfma_f32_16x16x32_bf16 %s, %s, %s, %s" % (vr(d, 4), vr(a, 4), vr(b, 4), cs), "M",
             rd=rd, wr=R(d, 4), srcc=([] if c is None else R(c, 4)))
def tr(d, addr, off, after=None):
    return I("ds_read_b64_tr_b16 %s, v%d offset:%d" % (vr(d, 2), addr, off), "L", rd=[addr], wr=R(d, 2), ld=True, after=after)
def rd128(d, addr, off, after=None):
    return I("ds_read_b128 %s, v%d offset:%d" % (vr(d, 4), addr, off), "L", rd=[addr], wr=R(d, 4), ld=True, after=after)
def rd32(d, addr, off=0, after=None):
    return I("ds_read_b32 v%d, v%d offset:%d" % (d, addr, off), "L", rd=[addr], wr=[d], ld=True, after=after)
def V(t, rd=(), wr=(), after=None, dpp=False):
    return I(t, "V", rd=rd, wr=wr, after=after, dpp=dpp)
def S(t, after=None, rd=()):
    return I(t, "S", rd=rd, after=after)

LAT_L = 8
LAT_M = 3

def schedule(main, streams, pos0, pend_hint=(), vec_cap=2):
    out = []
    streams = [list(s) for s in streams]
    ready = {}
    pend = set(pend_hint)
    given = set()
    gap = 0
    mi = 0
    pos = pos0 - 1
    def head_ok(ins, for_m=False):
        if ins.after is not None and pos < ins.after and mi < len(main):
            return False
        if not ins.need <= given:
            return False
        for r in ins.rd | ins.wr:
            if ready.get(r, -1) > gap:
                return False
        return True
    def emit(ins):
        need = (ins.rd | ins.wr) & pend
        if need and not (ins.k == "L" and not (ins.rd & pend)):
            out.append(I("WAIT", "W", rd=need))
            pend.difference_update(need)
        out.append(ins)
        given.update(ins.give)
        if ins.ld:
            for r in ins.wr:
                ready[r] = gap + LAT_L
                pend.add(r)
        elif ins.k == "M":
            for r in ins.wr:
                ready[r] = gap + LAT_M
        elif ins.k == "V":
            for r in ins.wr:
                ready[r] = gap + (1 if True else 0)
    def remaining():
        return sum(len(s) for s in streams)
    while mi < len(main) or remaining():
        issued = False
        for s in streams:
            if s and s[0].k == "M" and head_ok(s[0]):
                emit_m = s.pop(0); issued = True
                break
        if not issued and mi < len(main):
            emit_m = main[mi]; mi += 1; pos += 1; issued = True
        if issued:
            emit(emit_m)
            if emit_m in main:
                for r in emit_m.wr:
                    ready.pop(r, None)
        gap += 1
        nxt = None
        for s in streams:
            if s and s[0].k == "M" and head_ok(s[0]):
                nxt = s[0]; break
        if nxt is None and mi < len(main):
            nxt = main[mi]
        gapins = []
        scalar_used = False
        if nxt is not None and (nxt.rd & pend):
            need = nxt.rd & pend
            out.append(I("WAIT", "W", rd=need)); pend.difference_update(need)
            scalar_used = True
        nvec = 0
        last = None
        cap = vec_cap if issued else 4
        progress = True
        while progress:
            progress = False
            for s in streams:
                if not s: continue
                h = s[0]
                if h.k == "M" or not head_ok(h): continue
                if h.k == "S":
                    if not scalar_used and nvec == 0:
                        pass
                    elif nvec >= cap:
                        continue
                    if h.rd & pend and scalar_used and nvec + 2 > cap:
                        continue
                    s.pop(0)
                    had = bool(h.rd & pend)
                    emit(h)
                    if not scalar_used and nvec == 0:
                        scalar_used = True
                        if had: nvec += 1
                    else:
                        nvec += 1 + (1 if had else 0)
                    last = h; progress = True
                    break
                if nvec >= cap: continue
                if h.k == "L" and last is not None and last.k == "V": continue
                needw = ((h.rd | h.wr) & pend) if h.k == "V" else (h.rd & pend)
                if needw:
                    if scalar_used or nvec > 0:
                        if nvec + 2 > cap: continue
                        nvec += 1
                    else:
                        scalar_used = True
                elif not scalar_used and nvec == 0 and h.k == "L" and issued:
                    took = False
                    for s2 in streams:
                        if s2 and s2[0].k == "S" and head_ok(s2[0]) and not (s2[0].rd & pend):
                            emit(s2.pop(0)); took = True; break
                    if not took:
                        out.append(I("s_nop 0", "N"))
                    scalar_used = True
                    if not s or s[0] is not h:
                        progress = True
                        break
                s.pop(0)
                emit(h)
                nvec += 1
                last = h; progress = True
                break
        if gap > 2000:
            raise RuntimeError("scheduler stuck: %r" % [s[0] for s in streams if s])
    res = []
    for i, ins in enumerate(out):
        if ins.k == "N":
            j = i + 1; nl = 0
            while j < len(out) and out[j].k != "M":
                if out[j].k == "L": nl += 1
                j += 1
            if nl < 2: continue
        res.append(ins)
    return res

def lgkm_pass(block, state):
    st = dict(state)
    out = []
    def wait_for(regs):
        need = [st[r] for r in regs if r in st]
        if not need: return
        n = min(min(need), 15)
        out.append(I("s_waitcnt lgkmcnt(%d)" % n, "S"))
        for r in list(st):
            if st[r] >= n: del st[r]
    for ins in block:
        if ins.k == "W":
            wait_for(ins.rd); continue
        if ins.k == "L":
            wait_for(ins.rd)
        else:
            wait_for(ins.rd | ins.wr)
        m = re.match(r"s_waitcnt lgkmcnt\((\d+)\)", ins.t)
        if m:
            n = int(m.group(1))
            for r in list(st):
                if st[r] >= n: del st[r]
        out.append(ins)
        if ins.k == "L":
            for r in st: st[r] += 1
            if ins.ld:
                for r in ins.wr: st[r] = 0
    return out, st

def merge_states(states):
    res = {}
    for s in states:
        for r, c in s.items():
            res[r] = min(res.get(r, 99), c)
    return res

def hazard_pass(block, prev=()):
    out = []
    def states_needed(hist, ins):
        need = 0
        d = 0
        for p in reversed(hist):
            if d >= 9: break
            req = 0
            if p.k == "V":
                if ins.k == "M" and (p.wr & ins.rd): req = 2
                if ins.k == "V" and ins.dpp and (p.wr & (ins.rd | (ins.wr if "permlane" in ins.t else set()))): req = 2
                if ins.k == "V" and "readfirstlane" in ins.t and (p.wr & ins.rd): req = max(req, 1)
            if p.k == "M":
                if ins.k in ("V", "L", "X") and (p.wr & (ins.rd | ins.wr)): req = 8
                if ins.k == "M":
                    ab = ins.rd - ins.srcc
                    if p.wr & ab: req = 8
                    elif (p.wr & ins.srcc) and p.wr != ins.srcc: req = 6
                    elif (p.wr & ins.wr) and not (p.wr == ins.srcc): req = 8
                if ins.k == "V" and (p.srcc & ins.wr): req = max(req, 3)
            need = max(need, req - d)
            m = re.match(r"s_nop (\d+)", p.t)
            d += (int(m.group(1)) + 1) if m else 1
        return need
    for ins in block:
        if ins.k in ("M", "V", "L", "X"):
            if len(out) >= 9 or not prev:
                need = states_needed(out, ins)
            else:
                need = max(states_needed(list(p) + out, ins) for p in prev)
            if need > 0:
                out.append(I("s_nop %d" % (need - 1), "S"))
        if ins.k == "N":
            ins = I("s_nop 0", "S")
        out.append(ins)
    return out
```

```python
import sys
from sched import *

NAME = "standalone__deformable_dcnv1__vision"
DIAG = "--diag" in sys.argv
OUT = [a for a in sys.argv[1:] if not a.startswith("--")][0]

XROWS = 18
XB = 0
WB = XROWS * 4096
WSLOT = 18816
OFFB = WB + 3 * WSLOT
INFB = OFFB + 21 * 1024
FLB = INFB + 8192
LDS_TOTAL = FLB + 64
assert FLB % 32 == 0 and LDS_TOTAL <= 163840

ACC = 176
AF = 104
BF = 56
TT = 32
CB = 24
INF = 20
A0, A1, A2, A3 = 16, 17, 18, 19
VFL = 15
WBs = [0, 1, 2]
BAD, BAD3, N6, G16, CC16 = 3, 4, 5, 6, 7
SEL = [8, 9, 10, 11]
VINFA, VFLA = 12, 13
VT = 14
def acc(slot, i): return ACC + (slot * 6 + i) * 4 if slot < 3 else ACC + 72 + i * 4
def af(u, i): return AF + (u * 6 + i) * 4
def bf(slot, u): return BF + slot * 12 + u * 4

SX, SO, SW, SD = 4, 8, 12, 16
S_WID, S_W, S_R0, S_C0, S_H, S_A0, S_B0, S_MT, S_ML = 20, 21, 22, 23, 24, 25, 26, 27, 28
S_KJ, S_ROW, S_ROW3, S_RING, S_WD, S_T, S_FN, S_F1, S_C, S_COMB, S_PAR, S_192, S_FFF = range(30, 43)
S_T2 = 43

L = []
def E(x): L.append(x)
def EB(block):
    for i in block: E("    " + i.t)

ORDER = [0, 3, 1, 2]
def main_mfmas():
    m = []
    for slot in ORDER:
        for u in range(3):
            for i in range(6 if slot < 3 else 2):
                m.append(mfma(acc(slot, i), af(u, i), bf(slot, u), acc(slot, i)))
    return m
NPOS = 60
FREE = {0: 17, 3: 23, 1: 41, 2: -1}
SEGS = [(0, 15, 2), (15, 30, 0), (30, 45, 3), (45, 60, 1)]
BARPOS = 30

def w_reads():
    res = []
    for q in range(18):
        u, i = divmod(q, 6)
        tq = 42 + int(q * 1.45)
        for sec in range(2):
            res.append((tq + (sec if q % 2 else 0), (af(u, i) + 2 * sec, WBs[i // 2], u * 6272 + sec * 768 + 32 * (i % 2))))
    return res
def w_stream(lo, hi):
    s = []
    allr = w_reads()
    tail = [(t - 60, x) for t, x in allr if t >= 60]
    head = [(t, x) for t, x in allr if t < 60]
    for t, (d, b, off) in tail + head:
        if lo <= t < hi:
            s.append(tr(d, b, off, after=t))
    is_tail = [t for t, _ in tail if lo <= t < hi]
    if is_tail:
        s[len(is_tail) - 1].G("wtail")
    return s

def prep_fast(slot):
    ad = BAD3 if slot == 3 else BAD
    base = 0 if slot == 3 else slot * 16384
    s = [rd128(bf(slot, u), ad, base + 64 * u, after=FREE[slot]) for u in range(3)]
    if slot != 2:
        for x in s: x.N("newaddr")
    s[-1].G("addr_used", "info_used")
    return [s]

def dppq(c): return "quad_perm:[%d,%d,%d,%d] row_mask:0xf bank_mask:0xf" % (c, c, c, c)

def prep_interp(slot, four):
    fr = FREE[slot]
    ld, mm, cv = [], [], []
    ld.append(V("v_xor_b32_dpp v%d, v%d, v%d %s" % (A0, INF, CC16, dppq(slot)), rd=[INF, CC16], wr=[A0], dpp=True))
    ld.append(V("v_xor_b32_dpp v%d, v%d, v%d %s" % (A1, INF + 1, CC16, dppq(slot)), rd=[INF + 1, CC16], wr=[A1], dpp=True))
    ld.append(V("v_mov_b32_dpp v%d, v%d %s" % (CB + 3, INF + 2, dppq(slot)), rd=[INF + 2], wr=[CB + 3], dpp=True))
    if four:
        ld.append(V("v_mov_b32_dpp v%d, v%d %s" % (CB + 7, INF + 3, dppq(slot)), rd=[INF + 3], wr=[CB + 7], dpp=True))
    ld[-1].G("addr_used", "info_used", "cb")
    def gset(u, b): return bf(slot, u) if b == 0 else TT + 4 * u
    seq = [(u, 1) for u in range(3)] + [(u, 0) for u in range(3)]
    for (u, b) in seq:
        g = gset(u, b)
        a = fr if b == 0 else None
        ld.append(tr(g, A0, 64 * u + 8 * b, after=a))
        ld.append(tr(g + 2, A1, 64 * u + 8 * b, after=a).G(("g", u, b)))
    pm = []
    for d in range(4):
        pm.append(V("v_perm_b32 v%d, v%d, v%d, v%d" % (CB + d, CB + 3, CB + 3, SEL[d]), rd=[CB + 3, SEL[d]], wr=[CB + d]).N("cb"))
    pm[-1].G("cbA")
    if four:
        for d in range(4):
            pm.append(V("v_perm_b32 v%d, v%d, v%d, v%d" % (CB + 4 + d, CB + 7, CB + 7, SEL[d]), rd=[CB + 7, SEL[d]], wr=[CB + 4 + d]))
        pm[-1].G("cbB")
        pm.append(V("v_bfi_b32 v%d, s%d, v%d, v%d" % (A2, S_FFF, A1, A0), rd=[A0, A1], wr=[A2]))
        pm.append(V("v_bfi_b32 v%d, s%d, v%d, v%d" % (A3, S_FFF, A0, A1), rd=[A0, A1], wr=[A3]).G("a23"))
        for k, (u, b) in enumerate(seq):
            g = TT + 12 + 4 * (k % 3)
            x = tr(g, A2, 64 * u + 8 * b).N("a23")
            if k >= 3: x.N(("mB", k - 3))
            ld.append(x)
            ld.append(tr(g + 2, A3, 64 * u + 8 * b).G(("h", k)))
    if not four:
        for (u, b) in seq:
            g = gset(u, b)
            mm.append(mfma(g, g, CB).N(("g", u, b), "cbA").G(("m", u, b)))
    else:
        for (u, b) in seq:
            g = gset(u, b)
            mm.append(mfma(g, g, CB).N(("g", u, b), "cbA"))
        for k, (u, b) in enumerate(seq):
            g = gset(u, b)
            mm.append(mfma(g, TT + 12 + 4 * (k % 3), CB + 4, g).N(("h", k), "cbB").G(("m", u, b), ("mB", k)))
    for u in range(3):
        B = bf(slot, u); T = TT + 4 * u
        cv.append(V("v_cvt_pk_bf16_f32 v%d, v%d, v%d" % (B, B, B + 1), rd=[B, B + 1], wr=[B]).N(("m", u, 0)))
        cv.append(V("v_cvt_pk_bf16_f32 v%d, v%d, v%d" % (B + 1, B + 2, B + 3), rd=[B + 2, B + 3], wr=[B + 1]))
        cv.append(V("v_cvt_pk_bf16_f32 v%d, v%d, v%d" % (B + 2, T, T + 1), rd=[T, T + 1], wr=[B + 2]).N(("m", u, 1)))
        cv.append(V("v_cvt_pk_bf16_f32 v%d, v%d, v%d" % (B + 3, T + 2, T + 3), rd=[T + 2, T + 3], wr=[B + 3]))
    return [ld, mm, cv, pm]

def fallback_code(slot):
    pre, c = [], []
    pre.append(V("v_subrev_u32 v%d, 6, v%d" % (TT, N6), rd=[N6], wr=[TT]))
    pre.append(V("v_and_b32 v%d, 3, v%d" % (TT + 1, TT), rd=[TT], wr=[TT + 1]))
    pre.append(V("v_and_b32 v%d, 12, v%d" % (TT, TT), rd=[TT], wr=[TT]))
    pre.append(V("v_lshlrev_b32 v%d, 2, v%d" % (TT, TT), rd=[TT], wr=[TT]))
    pre.append(V("v_lshl_or_b32 v%d, v%d, 6, v%d" % (TT, TT + 1, TT), rd=[TT, TT + 1], wr=[TT]))
    for k, d in enumerate([A0, A1, CB + 4, CB + 5]):
        pre.append(I("ds_bpermute_b32 v%d, v%d, v%d offset:%d" % (d, TT, INF + k, 4 * slot), "L", rd=[TT, INF + k], wr=[d], ld=True))
    pre[-1].G("addr_used", "info_used")
    c.append(V("v_sub_u32 v%d, v%d, v%d" % (A2, A1, A0), rd=[A0, A1], wr=[A2]))
    c.append(V("v_and_b32 v%d, 0xff, v%d" % (A2, A2), rd=[A2], wr=[A2]))
    c.append(V("v_add_u32 v%d, v%d, v%d" % (A0, A0, G16), rd=[A0, G16], wr=[A0]))
    c.append(V("v_add_u32 v%d, v%d, v%d" % (A1, A1, G16), rd=[A1, G16], wr=[A1]))
    c.append(V("v_sub_u32 v%d, v%d, v%d" % (A3, A1, A2), rd=[A1, A2], wr=[A3]))
    c.append(V("v_add_u32 v%d, v%d, v%d" % (A2, A0, A2), rd=[A0, A2], wr=[A2]))
    c.append(V("v_lshlrev_b32 v%d, 16, v%d" % (CB, CB + 4), rd=[CB + 4], wr=[CB]))
    c.append(V("v_and_b32 v%d, 0xffff0000, v%d" % (CB + 1, CB + 4), rd=[CB + 4], wr=[CB + 1]))
    c.append(V("v_lshlrev_b32 v%d, 16, v%d" % (CB + 2, CB + 5), rd=[CB + 5], wr=[CB + 2]))
    c.append(V("v_and_b32 v%d, 0xffff0000, v%d" % (CB + 3, CB + 5), rd=[CB + 5], wr=[CB + 3]))
    for u in range(3):
        for k in range(4):
            c.append(I("buffer_load_dwordx4 %s, v%d, s[%d:%d], 0 offen offset:%d" % (vr(TT + 4 * k, 4), A0 + k, SX, SX + 3, 64 * u),
                       "X", rd=[A0 + k], wr=R(TT + 4 * k, 4)))
        for k in range(4):
            c.append(S("s_waitcnt vmcnt(%d)" % (3 - k)))
            for d in range(4):
                g = TT + 4 * k + d
                lo, hi = TT + 16 + 2 * d, TT + 17 + 2 * d
                c.append(V("v_lshlrev_b32 v%d, 16, v%d" % (CB + 6, g), rd=[g], wr=[CB + 6]))
                c.append(V("v_and_b32 v%d, 0xffff0000, v%d" % (CB + 7, g), rd=[g], wr=[CB + 7]))
                if k == 0:
                    c.append(V("v_mul_f32 v%d, v%d, v%d" % (lo, CB, CB + 6), rd=[CB, CB + 6], wr=[lo]))
                    c.append(V("v_mul_f32 v%d, v%d, v%d" % (hi, CB, CB + 7), rd=[CB, CB + 7], wr=[hi]))
                else:
                    c.append(V("v_fmac_f32 v%d, v%d, v%d" % (lo, CB + k, CB + 6), rd=[CB + k, CB + 6, lo], wr=[lo]))
                    c.append(V("v_fmac_f32 v%d, v%d, v%d" % (hi, CB + k, CB + 7), rd=[CB + k, CB + 7, hi], wr=[hi]))
        for d in range(4):
            lo, hi = TT + 16 + 2 * d, TT + 17 + 2 * d
            B = bf(slot, u) + d
            c.append(V("v_cvt_pk_bf16_f32 v%d, v%d, v%d" % (B, lo, hi), rd=[lo, hi], wr=[B]))
    return pre, c

def addr_calc():
    return [
        V("v_add_u32 v%d, s%d, v%d" % (VT, S_KJ, N6), rd=[N6], wr=[VT]).N("tapadv"),
        V("v_lshlrev_b32 v%d, 3, v%d" % (BAD3, VT), rd=[VT], wr=[BAD3]).N("addr_used"),
        V("v_bitop3_b32 v%d, v%d, 32, v%d bitop3:0x6a" % (BAD3, BAD3, G16), rd=[BAD3, G16], wr=[BAD3]),
        V("v_mad_u32_u24 v%d, v%d, s%d, v%d" % (VT, VT, S_192, BAD3), rd=[VT, BAD3], wr=[VT]),
        V("v_add_u32 v%d, s%d, v%d" % (BAD, S_ROW, VT), rd=[VT], wr=[BAD]),
        V("v_add_u32 v%d, s%d, v%d" % (BAD3, S_ROW3, VT), rd=[VT], wr=[BAD3]).G("newaddr"),
    ]
def tap_adv():
    return [
        S("s_add_u32 s%d, s%d, 1" % (S_KJ, S_KJ)),
        S("s_cmp_eq_u32 s%d, 5" % S_KJ),
        S("s_cselect_b32 s%d, 0x1000, 0" % S_T),
        S("s_cselect_b32 s%d, 0, s%d" % (S_KJ, S_KJ)),
        S("s_add_u32 s%d, s%d, s%d" % (S_ROW, S_ROW, S_T)),
        S("s_add_u32 s%d, s%d, s%d" % (S_ROW3, S_ROW3, S_T)).G("tapadv"),
        S("s_add_u32 s%d, s%d, 1" % (S_RING, S_RING)),
        S("s_cmp_eq_u32 s%d, 3" % S_RING),
        S("s_cselect_b32 s%d, 0x%x, 0x%x" % (S_WD, 0, 0)),
        S("s_cselect_b32 s%d, 0, s%d" % (S_RING, S_RING)).G("wd"),
    ]
S_WDM, S_WDP = 44, 45
def salu_seg0():
    s = tap_adv()
    s[8].t = "s_cselect_b32 s%d, s%d, s%d" % (S_WD, S_WDM, S_WDP)
    return s
def wbase_upd():
    s = [V("v_add_u32 v%d, s%d, v%d" % (w, S_WD, w), rd=[w], wr=[w]) for w in WBs]
    s[0].N("wd", "wtail")
    return s
def info_read():
    return [V("v_add_u32 v%d, s%d, v%d" % (VFL, S_PAR, VINFA), rd=[VINFA], wr=[VFL]).N("info_used"),
            rd128(INF, VFL, 0)]
def bar_stream(general):
    s = [S("s_barrier", after=BARPOS - 1, rd=(R(INF, 4) if general else [])).G("bar")]
    return s
def flag_read():
    return [rd32(VFL, VFLA, 0).N("bar"),
            V("v_xor_b32 v%d, 16, v%d" % (VFLA, VFLA), rd=[VFLA], wr=[VFLA]),
            V("v_readfirstlane_b32 s%d, v%d" % (S_FN, VFL), rd=[VFL]).G("fn")]
def flag_upd(after):
    return [S("s_and_b32 s%d, s%d, 0x30" % (S_C, S_F1), after=after).N("fn"),
            S("s_xor_b32 s%d, s%d, 0x1000" % (S_PAR, S_PAR)),
            S("s_mov_b32 s%d, s%d" % (S_F1, S_FN)),
            S("s_or_b32 s%d, s%d, s%d" % (S_COMB, S_C, S_FN)),
            S("s_cmp_eq_u32 s%d, 0" % S_COMB).G("end")]

ALLLD = set(R(AF, 72) + R(BF, 48) + R(INF, 4) + [VFL])

def build_fast():
    m = main_mfmas()
    st = []
    p2 = prep_fast(2)[0]
    st.append(p2)
    st.append(w_stream(0, 60))
    st.append(salu_seg0() + bar_stream(False) + flag_upd(50))
    st.append(addr_calc() + wbase_upd())
    st.append(prep_fast(0)[0] + prep_fast(3)[0] + prep_fast(1)[0])
    st.append(flag_read())
    return schedule(m, st, 0, pend_hint=ALLLD)

def build_seg(k, mode, pro=False):
    lo, hi, slot = SEGS[k]
    m = [] if pro else main_mfmas()[lo:hi]
    st = []
    post = []
    if mode == 0: pr = prep_fast(slot)
    elif mode == 1: pr = prep_interp(slot, False)
    elif mode == 2: pr = prep_interp(slot, True)
    else:
        pre, post = fallback_code(slot); pr = [pre]
    pre_given = []
    if k != 0:
        for s in pr:
            for x in s: x.need.discard("newaddr")
    ws = w_stream(lo, hi)
    if pro:
        for s in pr + [ws]:
            for x in s: x.after = None
    st.append(pr[0])
    st.append(ws)
    st += pr[1:]
    if not pro:
        if k == 0:
            st.append(salu_seg0())
            st.append(info_read())
            st.append(addr_calc() + wbase_upd())
        if k == 2:
            st.append(bar_stream(True))
            fr = flag_read()
            st.append(fr)
        if k == 3:
            fu = flag_upd(None)
            fu[0].need.discard("fn")
            st.append(fu)
    cap = 2 if mode == 0 else 3
    b = schedule(m, st, lo, pend_hint=ALLLD, vec_cap=cap)
    return b + post

blocks = {}
blocks["FAST"] = build_fast()
for k in range(4):
    for mode in range(4):
        blocks["G%d_%d" % (k, mode)] = build_seg(k, mode)
for k in range(1, 4):
    for mode in range(4):
        blocks["P%d_%d" % (k, mode)] = build_seg(k, mode, pro=True)
preds = {}
G = lambda k: ["G%d_%d" % (k, m) for m in range(4)]
P = lambda k: ["P%d_%d" % (k, m) for m in range(4)]
for n in P(1): preds[n] = []
for k in (2, 3):
    for n in P(k): preds[n] = P(k - 1)
for n in ["FAST"] + G(0): preds[n] = P(3) + ["FAST"] + G(3)
for k in (1, 2, 3):
    for n in G(k): preds[n] = G(k - 1)
exits = {n: {} for n in blocks}
final = {}
for it in range(6):
    changed = False
    for n in blocks:
        ent = merge_states([exits[p] for p in preds[n]])
        b, ex = lgkm_pass(blocks[n], ent)
        final[n] = b
        mx = merge_states([exits[n], ex])
        if mx != exits[n]:
            exits[n] = mx; changed = True
    if not changed: break
assert not changed
hz = {}
for n in blocks:
    hz[n] = hazard_pass(final[n], prev=[final[p][-9:] for p in preds[n]])
EXIT_STATE = merge_states([exits["FAST"]] + [exits[n] for n in G(3)])

def stats(n):
    b = hz[n]
    from collections import Counter
    return n, len(b), dict(Counter(i.k for i in b))

E("; @launch grid=(256,1,1) block=(512,1,1) lds=%d" % LDS_TOTAL)
E('.amdgcn_target "amdgcn-amd-amdhsa--gfx950"')
E(".text")
E(".globl %s_kernel" % NAME)
E(".p2align 8")
E(".type %s_kernel,@function" % NAME)
E("%s_kernel:" % NAME)
def A(s):
    for line in s.strip("\n").split("\n"):
        E("    " + line.strip() if not line.strip().endswith(":") else line.strip())

def stamp(idx):
    if DIAG:
        A("s_memtime s[%d:%d]" % (80 + 2 * idx, 81 + 2 * idx))

stamp(0)
A(f"""
s_load_dwordx8 s[64:71], s[0:1], 0
s_cmp_ge_u32 s2, 256
s_cbranch_scc1 L_end
s_and_b32 s3, s2, 7
s_lshl_b32 s3, s3, 5
s_lshr_b32 s29, s2, 3
s_add_u32 s3, s3, s29
s_cmp_ge_u32 s3, 252
s_cbranch_scc1 L_end
v_lshrrev_b32 v1, 6, v0
v_and_b32 v0, 63, v0
s_mul_i32 s29, s3, 3641
v_readfirstlane_b32 s{S_WID}, v1
s_lshr_b32 s29, s29, 16
s_lshl_b32 s{S_C0}, s29, 4
s_mul_i32 s29, s29, 18
s_sub_u32 s29, s3, s29
s_mul_i32 s{S_R0}, s29, 13
s_sub_u32 s{S_H}, 224, s{S_R0}
s_min_u32 s{S_H}, s{S_H}, 13
s_min_u32 s{S_MT}, s{S_R0}, 1
s_min_u32 s{S_ML}, s{S_C0}, 1
s_sub_i32 s{S_A0}, s{S_R0}, s{S_MT}
s_sub_i32 s{S_A0}, s{S_A0}, 2
s_sub_i32 s{S_B0}, s{S_C0}, s{S_ML}
s_sub_i32 s{S_B0}, s{S_B0}, 2
s_and_b32 s{S_W}, s{S_WID}, 3
s_mov_b32 s{SX+2}, 9633792
s_mov_b32 s{SX+3}, 0x00020000
s_mov_b32 s{SO+2}, 5017600
s_mov_b32 s{SO+3}, 0x00020000
s_mov_b32 s{SW+2}, 460800
s_mov_b32 s{SW+3}, 0x00020000
s_mov_b32 s{SD+2}, 9633792
s_mov_b32 s{SD+3}, 0x00020000
""")
for m in range(3):
    A(f"""
s_add_u32 s29, s{S_WID}, {8*m}
s_lshl_b32 s29, s29, 6
v_add_u32 v2, s29, v0
v_mul_u32_u24 v3, 5243, v2
v_lshrrev_b32 v3, 19, v3
v_mul_u32_u24 v4, 100, v3
v_sub_u32 v4, v2, v4
v_add_u32 v3, s{S_R0}, v3
v_min_u32 v3, 223, v3
v_mul_u32_u24 v3, 22400, v3
v_lshl_add_u32 v{10+m}, v4, 4, v3
""")
A(f"""
s_lshl_b32 s29, s{S_W}, 6
v_add_u32 v2, s29, v0
v_mul_u32_u24 v3, 171, v2
v_lshrrev_b32 v3, 11, v3
v_mul_u32_u24 v4, 12, v3
v_sub_u32 v4, v2, v4
v_add_u32 v3, s{S_B0}, v3
v_lshrrev_b32 v5, 1, v3
v_and_b32 v5, 2, v5
v_xor_b32 v4, v4, v5
v_max_i32 v3, 0, v3
v_min_i32 v3, 223, v3
v_mul_u32_u24 v3, 192, v3
v_lshl_add_u32 v13, v4, 4, v3
s_waitcnt lgkmcnt(0)
s_mov_b32 s{SX}, s64
s_and_b32 s{SX+1}, s65, 0xffff
s_mov_b32 s{SO}, s66
s_and_b32 s{SO+1}, s67, 0xffff
s_mov_b32 s{SW}, s68
s_and_b32 s{SW+1}, s69, 0xffff
s_mov_b32 s{SD}, s70
s_and_b32 s{SD+1}, s71, 0xffff
s_mul_i32 s46, s{S_C0}, 100
s_lshl_b32 s47, s{S_WID}, 10
s_add_u32 s47, s47, {OFFB}
s_mov_b32 m0, s47
s_add_u32 s47, s47, 8192
buffer_load_dwordx4 v10, s[{SO}:{SO+3}], s46 offen lds
s_mov_b32 m0, s47
s_add_u32 s47, s47, 8192
buffer_load_dwordx4 v11, s[{SO}:{SO+3}], s46 offen lds
s_cmp_ge_u32 s{S_WID}, 5
s_cbranch_scc1 L_no3rd
s_mov_b32 m0, s47
s_nop 0
buffer_load_dwordx4 v12, s[{SO}:{SO+3}], s46 offen lds
L_no3rd:
s_lshr_b32 s46, s{S_WID}, 2
s_lshl_b32 s47, s46, 12
s_lshl_b32 s48, s{S_W}, 10
s_add_u32 s47, s47, s48
s_add_i32 s46, s46, s{S_A0}
""")
for m in range(9):
    A(f"""
s_max_i32 s48, s46, 0
s_min_i32 s48, s48, 223
s_mul_i32 s48, s48, 43008
s_mov_b32 m0, s47
s_add_u32 s47, s47, 8192
buffer_load_dwordx4 v13, s[{SX}:{SX+3}], s48 offen lds
s_add_i32 s46, s46, 2
""")
A(f"""
s_cmp_ge_u32 s{S_WID}, 4
s_cbranch_scc1 L_helper
""")

A(f"""
s_setprio 3
v_lshrrev_b32 v20, 4, v0
v_and_b32 v21, 15, v0
v_bfe_u32 v22, v0, 2, 2
v_and_b32 v23, 3, v0
v_add_u32 v{N6}, 6, v21
v_lshlrev_b32 v{G16}, 4, v20
v_lshlrev_b32 v{CC16}, 4, v23
v_lshlrev_b32 v24, 4, v0
s_lshl_b32 s29, s{S_W}, 10
s_add_u32 s29, s29, {INFB}
v_add_u32 v{VINFA}, s29, v24
s_lshl_b32 s29, s{S_W}, 2
s_add_u32 s29, s29, {FLB}
v_mov_b32 v{VFLA}, s29
v_mul_u32_u24 v24, 1568, v20
v_mul_u32_u24 v25, 192, v22
v_lshlrev_b32 v26, 3, v23
v_add3_u32 v24, v24, v25, v26
v_add_u32 v24, {WB}, v24
s_cmp_eq_u32 s{S_W}, 3
s_cselect_b32 s46, 0, s{S_W}
s_lshl_b32 s47, s46, 6
v_add_u32 v{WBs[0]}, s47, v24
s_add_u32 s47, s47, 64
s_cmp_eq_u32 s47, 192
s_cselect_b32 s47, 0, s47
v_add_u32 v{WBs[1]}, s47, v24
s_add_u32 s47, s47, 64
s_cmp_eq_u32 s47, 192
s_cselect_b32 s47, 0, s47
v_add_u32 v{WBs[2]}, s47, v24
""")
A(f"""
v_and_b32 v25, 1, v22
v_lshrrev_b32 v26, 1, v22
v_mov_b32 v27, 0x0c0c0100
v_mov_b32 v28, 0x01000c0c
v_cmp_eq_u32 vcc, 1, v25
v_mov_b32 v29, 0x0c0c0302
v_mov_b32 v30, 0x03020c0c
v_cndmask_b32 v27, v27, v28, vcc
v_cndmask_b32 v29, v29, v30, vcc
v_cmp_eq_u32 s[46:47], v23, v20
v_cmp_eq_u32 s[48:49], 0, v26
v_mov_b32 v28, 0x0c0c0c0c
s_and_b64 s[50:51], s[46:47], s[48:49]
s_andn2_b64 s[52:53], s[46:47], s[48:49]
v_cndmask_b32 v{SEL[0]}, v28, v27, s[50:51]
v_cndmask_b32 v{SEL[1]}, v28, v27, s[52:53]
v_cndmask_b32 v{SEL[2]}, v28, v29, s[50:51]
v_cndmask_b32 v{SEL[3]}, v28, v29, s[52:53]
s_mov_b32 s{S_192}, 192
s_mov_b32 s{S_FFF}, 0xfff
s_mov_b32 s{S_WDM}, {(-2*WSLOT) & 0xffffffff}
s_mov_b32 s{S_WDP}, {WSLOT}
s_mov_b32 s{S_KJ}, 0
s_mov_b32 s{S_RING}, 0
s_sub_i32 s46, s{S_ML}, 6
s_mul_i32 s46, s46, 192
s_lshl_b32 s47, s{S_MT}, 12
s_add_i32 s46, s46, s47
s_add_i32 s{S_ROW3}, s46, {12*4096}
s_lshl_b32 s47, s{S_W}, 12
s_add_i32 s{S_ROW}, s46, s47
""")
for r in range(ACC, 256):
    A("v_mov_b32 v%d, 0" % r)
for x in addr_calc(): A(x.t)
A(f"""
s_cmp_ge_u32 s{S_WID}, 5
s_waitcnt vmcnt(9)
s_barrier
s_barrier
ds_read_b32 v{VFL}, v{VFLA}
ds_read_b32 v{VT}, v{VFLA} offset:16
ds_read_b128 {vr(INF,4)}, v{VINFA}
s_mov_b32 s{S_PAR}, 0x1000
s_waitcnt lgkmcnt(0)
v_readfirstlane_b32 s{S_T2}, v{VFL}
v_readfirstlane_b32 s{S_F1}, v{VT}
s_waitcnt vmcnt(0)
""")
stamp(1)
A("s_barrier")
stamp(2)
def dispatch(prefix, k, sreg, slot, nxt):
    A(f"s_bfe_u32 s{S_T}, s{sreg}, 0x2000{2*slot}")
    A(f"s_cmp_lg_u32 s{S_T}, 0")
    A(f"s_cbranch_scc1 L_{prefix}{k}_d")
    EB(hz["%s%d_0" % (prefix, k)])
    E(f"L_{prefix}{k}_end:")
def slow_variants(prefix, k):
    E(f"L_{prefix}{k}_d:")
    A(f"s_cmp_eq_u32 s{S_T}, 2")
    A(f"s_cbranch_scc1 L_{prefix}{k}_2")
    A(f"s_cmp_eq_u32 s{S_T}, 3")
    A(f"s_cbranch_scc1 L_{prefix}{k}_3")
    for mode in (1, 2, 3):
        E(f"L_{prefix}{k}_{mode}:")
        EB(hz["%s%d_%d" % (prefix, k, mode)])
        A(f"s_branch L_{prefix}{k}_end")
for k in (1, 2, 3):
    dispatch("P", k, S_T2, SEGS[k][2], None)
A(f"""
s_and_b32 s{S_C}, s{S_T2}, 0x30
s_or_b32 s{S_COMB}, s{S_C}, s{S_F1}
s_cmp_lg_u32 s{S_COMB}, 0
s_cbranch_scc1 L_general
""")
E(".p2align 6")
E("L_fast:")
EB(hz["FAST"])
A("s_cbranch_scc1 L_fast")
E("L_general:")
A(f"""
s_bitcmp1_b32 s{S_COMB}, 8
s_cbranch_scc1 L_epi
""")
dispatch("G", 0, S_C, 2, None)
dispatch("G", 1, S_F1, 0, None)
dispatch("G", 2, S_F1, 3, None)
dispatch("G", 3, S_F1, 1, None)
A(f"""
s_cmp_eq_u32 s{S_COMB}, 0
s_cbranch_scc1 L_fast
s_branch L_general
""")
for k in range(4): slow_variants("G", k)
for k in (1, 2, 3): slow_variants("P", k)

E("L_epi:")
stamp(3)
A(f"""
s_waitcnt lgkmcnt(0)
v_subrev_u32 v20, 6, v{N6}
v_mul_u32_u24 v20, 192, v20
v_lshrrev_b32 v21, 1, v{G16}
v_and_b32 v21, 16, v21
v_lshlrev_b32 v22, 1, v{G16}
v_and_b32 v22, 32, v22
v_add3_u32 v20, v20, v21, v22
s_cmp_eq_u32 s{S_W}, 3
s_cselect_b32 s46, 0, s{S_W}
s_lshl_b32 s46, s46, 6
v_add_u32 v21, s46, v20
s_add_u32 s46, s46, 64
s_cmp_eq_u32 s46, 192
s_cselect_b32 s46, 0, s46
v_add_u32 v22, s46, v20
s_add_u32 s46, s46, 64
s_cmp_eq_u32 s46, 192
s_cselect_b32 s46, 0, s46
v_add_u32 v23, s46, v20
s_mul_i32 s47, s{S_C0}, 192
s_nop 4
""")
tcur = [0]
for slot in range(4):
    if slot < 3:
        A(f"s_add_u32 s46, s{S_W}, {4*slot}")
    else:
        A(f"s_cmp_eq_u32 s{S_W}, 3")
        A(f"s_cselect_b32 s46, 13, 12")
    A(f"""
s_cmp_ge_u32 s46, s{S_H}
s_cbranch_scc1 L_skip{slot}
s_add_u32 s46, s46, s{S_R0}
s_mul_i32 s46, s46, 43008
s_add_u32 s46, s46, s47
""")
    for p in range(3 if slot < 3 else 1):
        t = 32 + 4 * ((slot * 3 + p) % 10)
        e, o = acc(slot, 2 * p), acc(slot, 2 * p + 1)
        A(f"""
v_cvt_pk_bf16_f32 v{t}, v{e}, v{e+1}
v_cvt_pk_bf16_f32 v{t+1}, v{e+2}, v{e+3}
v_cvt_pk_bf16_f32 v{t+2}, v{o}, v{o+1}
v_cvt_pk_bf16_f32 v{t+3}, v{o+2}, v{o+3}
s_nop 1
v_permlane16_swap_b32 v{t}, v{t+2}
v_permlane16_swap_b32 v{t+1}, v{t+3}
buffer_store_dwordx4 v[{t}:{t+3}], v{21+p}, s[{SD}:{SD+3}], s46 offen
""")
    E(f"L_skip{slot}:")
if DIAG:
    A("s_waitcnt vmcnt(0)")
    stamp(4)
    A(f"""
s_load_dwordx2 s[72:73], s[0:1], 40
s_lshl_b32 s46, s2, 2
s_add_u32 s46, s46, s{S_W}
s_lshl_b32 s46, s46, 5
v_mov_b32 v20, s46
s_waitcnt lgkmcnt(0)
""")
    for i in range(5):
        A(f"v_mov_b32 v21, s{80+2*i}")
        A(f"global_store_dword v20, v21, s[72:73] offset:{4*i}")
A("s_endpgm")

H_TAU, H_KJ, H_WS, H_WL, H_FLG, H_PAR, H_C223 = 30, 31, 32, 33, 34, 35, 36
H_VAL, H_SLOW, H_BOTH, H_OOB, H_TMP, H_M0, H_GM = 38, 40, 42, 44, 46, 48, 50
H_S1, H_S2, H_RING = 52, 53, 54
BY, BX, OFA, IFA, FLA, WV, D = 1, 2, 3, 4, 5, 6, 7
E("L_helper:")
A(f"""
v_lshlrev_b32 v{WV}, 4, v0
s_mul_i32 s{H_WS}, s{S_W}, {3*1536}
s_mul_i32 s{H_WL}, s{S_W}, {3*1568}
s_add_u32 s{H_WL}, s{H_WL}, {WB}
s_mov_b32 s{H_RING}, 0
""")
def w_issue():
    A("s_mov_b32 exec_hi, 0xffff")
    for m in range(3):
        A(f"""
s_add_u32 s{H_S1}, s{H_WL}, {m*1568}
s_mov_b32 m0, s{H_S1}
s_add_u32 s{H_S2}, s{H_WS}, {m*1536}
buffer_load_dwordx4 v{WV}, s[{SW}:{SW+3}], s{H_S2} offen lds
buffer_load_dwordx4 v{WV}, s[{SW}:{SW+3}], s{H_S2} offen offset:768 lds
""")
    A(f"""
s_mov_b32 exec_hi, -1
s_add_u32 s{H_WS}, s{H_WS}, 18432
s_cmp_ge_u32 s{H_WS}, 460800
s_cselect_b32 s{H_S1}, 460800, 0
s_sub_u32 s{H_WS}, s{H_WS}, s{H_S1}
s_add_u32 s{H_RING}, s{H_RING}, 1
s_cmp_eq_u32 s{H_RING}, 3
s_cselect_b32 s{H_S1}, {3*WSLOT}, 0
s_cselect_b32 s{H_RING}, 0, s{H_RING}
s_add_u32 s{H_WL}, s{H_WL}, {WSLOT}
s_sub_u32 s{H_WL}, s{H_WL}, s{H_S1}
""")
w_issue()
w_issue()
A(f"""
v_lshrrev_b32 v20, 4, v0
v_bfe_u32 v22, v0, 2, 2
v_and_b32 v23, 3, v0
v_lshl_add_u32 v20, v22, 2, v20
v_lshlrev_b32 v21, 2, v23
v_add_u32 v21, s{S_W}, v21
v_min_u32 v21, 12, v21
v_cmp_gt_u32 s[{H_VAL}:{H_VAL+1}], s{S_H}, v21
v_lshl_add_u32 v{OFA}, v21, 4, v20
v_mul_u32_u24 v{OFA}, 100, v{OFA}
v_add_u32 v{OFA}, {OFFB}, v{OFA}
v_add_u32 v21, s{S_R0}, v21
v_add_u32 v20, s{S_C0}, v20
v_cvt_f32_u32 v{BY}, v21
v_cvt_f32_u32 v{BX}, v20
v_add_f32 v{BY}, -2.0, v{BY}
v_add_f32 v{BX}, -2.0, v{BX}
s_lshl_b32 s29, s{S_W}, 10
s_add_u32 s29, s29, {INFB}
v_add_u32 v{IFA}, s29, v{WV}
s_lshl_b32 s29, s{S_W}, 2
s_add_u32 s29, s29, {FLB}
v_mov_b32 v{FLA}, s29
s_mov_b32 s{H_TAU}, 0
s_mov_b32 s{H_KJ}, 0
s_mov_b32 s{H_PAR}, 0
s_mov_b32 s{H_C223}, 0x435f435f
s_mov_b32 s{H_M0}, 0x11111111
s_mov_b32 s{H_M0+1}, 0x11111111
s_waitcnt vmcnt(21)
s_barrier
ds_read_b32 v{D}, v{OFA}
L_hloop:
s_cmp_lt_u32 s{H_TAU}, 2
s_cbranch_scc1 L_hnow
""")
w_issue()
A(f"""
L_hnow:
s_mov_b32 s{H_FLG}, 0
s_cmp_eq_u32 s{H_TAU}, 26
s_cselect_b32 s{H_FLG}, 0x100, 0
s_cmp_ge_u32 s{H_TAU}, 25
s_cbranch_scc1 L_hflags
s_waitcnt lgkmcnt(0)
v_lshlrev_b32 v10, 16, v{D}
v_and_b32 v11, 0xffff0000, v{D}
v_add_u32 v{OFA}, 4, v{OFA}
v_add_f32 v10, v{BY}, v10
v_add_f32 v11, v{BX}, v11
ds_read_b32 v{D}, v{OFA}
v_cvt_pk_bf16_f32 v12, v{BY}, v{BX}
v_cvt_pk_bf16_f32 v10, v10, v11
v_pk_max_i16 v12, v12, 0
v_pk_max_i16 v10, v10, 0
v_pk_min_i16 v12, v12, s{H_C223}
v_pk_min_i16 v10, v10, s{H_C223}
s_add_u32 s{H_KJ}, s{H_KJ}, 1
s_cmp_eq_u32 s{H_KJ}, 5
s_cselect_b32 s{H_S1}, 0xc0800000, 1.0
s_cselect_b32 s{H_S2}, 1.0, 0
s_cselect_b32 s{H_KJ}, 0, s{H_KJ}
v_cmp_ne_u32 vcc, v10, v12
v_add_f32 v{BX}, s{H_S1}, v{BX}
v_add_f32 v{BY}, s{H_S2}, v{BY}
s_and_b64 s[{H_SLOW}:{H_SLOW+1}], vcc, s[{H_VAL}:{H_VAL+1}]
s_cbranch_scc0 L_hflags
v_lshlrev_b32 v11, 16, v10
v_and_b32 v12, 0xffff0000, v10
v_floor_f32 v13, v11
v_floor_f32 v14, v12
v_ceil_f32 v15, v11
v_ceil_f32 v16, v12
v_sub_f32 v11, v11, v13
v_sub_f32 v12, v12, v14
v_cvt_i32_f32 v13, v13
v_cvt_i32_f32 v14, v14
v_cvt_i32_f32 v15, v15
v_cvt_i32_f32 v16, v16
v_sub_f32 v17, 1.0, v11
v_sub_f32 v18, 1.0, v12
v_cmp_ne_u32 vcc, v13, v15
v_cmp_ne_u32 s[{H_TMP}:{H_TMP+1}], v14, v16
v_cvt_pk_bf16_f32 v17, v17, v18
s_and_b64 vcc, vcc, s[{H_TMP}:{H_TMP+1}]
v_and_b32 v18, 0xffff0000, v17
v_lshlrev_b32 v17, 16, v17
s_and_b64 s[{H_BOTH}:{H_BOTH+1}], vcc, s[{H_VAL}:{H_VAL+1}]
v_mul_f32 v20, v17, v18
v_mul_f32 v21, v11, v12
v_mul_f32 v22, v17, v12
v_mul_f32 v23, v11, v18
v_add_f32 v24, v11, v12
v_cndmask_b32 v21, v24, v21, vcc
v_cndmask_b32 v22, 0, v22, vcc
v_cndmask_b32 v23, 0, v23, vcc
v_cvt_pk_bf16_f32 v30, v20, v21
v_cvt_pk_bf16_f32 v31, v22, v23
v_subrev_u32 v20, s{S_A0}, v13
v_subrev_u32 v21, s{S_B0}, v14
v_subrev_u32 v22, s{S_A0}, v15
v_subrev_u32 v23, s{S_B0}, v16
v_min_i32 v24, v20, v21
v_add_u32 v25, 3, v22
v_max_i32 v25, v25, v23
v_cmp_gt_i32 vcc, 0, v24
v_cmp_lt_i32 s[{H_TMP}:{H_TMP+1}], 20, v25
v_mul_u32_u24 v21, 192, v21
v_mul_u32_u24 v23, 192, v23
s_or_b64 vcc, vcc, s[{H_TMP}:{H_TMP+1}]
v_lshl_add_u32 v28, v20, 12, v21
v_lshl_add_u32 v29, v22, 12, v23
v_lshlrev_b32 v20, 3, v14
v_lshlrev_b32 v22, 3, v16
v_and_or_b32 v28, v20, 32, v28
v_and_or_b32 v29, v22, 32, v29
s_mov_b64 s[{H_GM}:{H_GM+1}], 0
s_and_b64 s[{H_OOB}:{H_OOB+1}], vcc, s[{H_VAL}:{H_VAL+1}]
""")
for c in range(4):
    A(f"""
s_lshl_b64 s[56:57], s[{H_M0}:{H_M0+1}], {c}
s_and_b64 s[{H_TMP}:{H_TMP+1}], s[56:57], s[{H_SLOW}:{H_SLOW+1}]
s_cselect_b32 s{H_S1}, {1 << (2*c)}, 0
s_and_b64 s[{H_TMP}:{H_TMP+1}], s[56:57], s[{H_BOTH}:{H_BOTH+1}]
s_cselect_b32 s{H_S1}, {2 << (2*c)}, s{H_S1}
s_and_b64 s[{H_TMP}:{H_TMP+1}], s[56:57], s[{H_OOB}:{H_OOB+1}]
s_cselect_b32 s{H_S1}, {3 << (2*c)}, s{H_S1}
s_cselect_b64 s[56:57], s[56:57], 0
s_or_b32 s{H_FLG}, s{H_FLG}, s{H_S1}
s_or_b64 s[{H_GM}:{H_GM+1}], s[{H_GM}:{H_GM+1}], s[56:57]
""")
A(f"""
s_cbranch_scc0 L_hnog
v_mul_u32_u24 v14, 192, v14
v_mul_u32_u24 v16, 192, v16
v_mul_u32_u24 v13, 43008, v13
v_mul_u32_u24 v15, 43008, v15
v_add_u32 v13, v13, v14
v_add_u32 v15, v15, v16
v_cndmask_b32 v28, v28, v13, s[{H_GM}:{H_GM+1}]
v_cndmask_b32 v29, v29, v15, s[{H_GM}:{H_GM+1}]
L_hnog:
v_add_u32 v20, s{H_PAR}, v{IFA}
ds_write_b128 v20, v[28:31]
L_hflags:
v_mov_b32 v21, s{H_FLG}
ds_write_b32 v{FLA}, v21
v_xor_b32 v{FLA}, 16, v{FLA}
s_xor_b32 s{H_PAR}, s{H_PAR}, 0x1000
s_add_u32 s{H_TAU}, s{H_TAU}, 1
s_cmp_eq_u32 s{H_TAU}, 1
s_cbranch_scc1 L_hloop
s_cmp_gt_u32 s{H_TAU}, 2
s_cbranch_scc1 L_hsteady
s_waitcnt lgkmcnt(0)
s_barrier
s_waitcnt vmcnt(6)
s_barrier
s_branch L_hloop
L_hsteady:
s_waitcnt vmcnt(6) lgkmcnt(0)
s_barrier
s_cmp_le_u32 s{H_TAU}, 26
s_cbranch_scc1 L_hloop
s_waitcnt vmcnt(0)
L_end:
s_endpgm
""")
E('.section .rodata,"a"')
E(".p2align 6")
E(".amdhsa_kernel %s_kernel" % NAME)
E("  .amdhsa_next_free_vgpr 256")
E("  .amdhsa_next_free_sgpr 102")
E("  .amdhsa_accum_offset 256")
E("  .amdhsa_group_segment_fixed_size 0")
E("  .amdhsa_kernarg_size 48")
E("  .amdhsa_user_sgpr_count 2")
E("  .amdhsa_user_sgpr_kernarg_segment_ptr 1")
E("  .amdhsa_system_sgpr_workgroup_id_x 1")
E("  .amdhsa_float_denorm_mode_32 3")
E(".end_amdhsa_kernel")
open(OUT, "w").write("\n".join(L) + "\n")
for n in hz: print(*stats(n))
```

```python
import sys
from sched import *

NAME = "standalone__deformable_dcnv1__vision"
DIAG = "--diag" in sys.argv
OUT = [a for a in sys.argv[1:] if not a.startswith("--")][0]

XROWS = 18
XB = 0
WB = XROWS * 4096
WSLOT = 18816
OFFB = WB + 3 * WSLOT
INFB = OFFB + 21 * 1024
FLB = INFB + 8192
LDS_TOTAL = FLB + 64
assert FLB % 32 == 0 and LDS_TOTAL <= 163840

ACC = 176
AF = 104
BF = 56
TT = 32
CB = 24
INF = 20
A0, A1, A2, A3 = 16, 17, 18, 19
VFL = 15
WBs = [0, 1, 2]
BAD, BAD3, N6, G16, CC16 = 3, 4, 5, 6, 7
SEL = [8, 9, 10, 11]
VINFA, VFLA = 12, 13
VT = 14
def acc(slot, i): return ACC + (slot * 6 + i) * 4 if slot < 3 else ACC + 72 + i * 4
def af(u, i): return AF + (u * 6 + i) * 4
def bf(slot, u): return BF + slot * 12 + u * 4

SX, SO, SW, SD = 4, 8, 12, 16
S_WID, S_W, S_R0, S_C0, S_H, S_A0, S_B0, S_MT, S_ML = 20, 21, 22, 23, 24, 25, 26, 27, 28
S_KJ, S_ROW, S_ROW3, S_RING, S_WD, S_T, S_FN, S_F1, S_C, S_COMB, S_PAR, S_192, S_FFF = range(30, 43)
S_T2 = 43

L = []
def E(x): L.append(x)
def EB(block):
    for i in block: E("    " + i.t)

ORDER = [0, 3, 1, 2]
def main_mfmas():
    m = []
    for slot in ORDER:
        for u in range(3):
            for i in range(6 if slot < 3 else 2):
                m.append(mfma(acc(slot, i), af(u, i), bf(slot, u), acc(slot, i)))
    return m
NPOS = 60
FREE = {0: 17, 3: 23, 1: 41, 2: -1}
SEGS = [(0, 15, 2), (15, 30, 0), (30, 45, 3), (45, 60, 1)]
BARPOS = 30

def w_reads():
    res = []
    for q in range(18):
        u, i = divmod(q, 6)
        tq = 42 + int(q * 1.45)
        for sec in range(2):
            res.append((tq + (sec if q % 2 else 0), (af(u, i) + 2 * sec, WBs[i // 2], u * 6272 + sec * 768 + 32 * (i % 2))))
    return res
def w_stream(lo, hi):
    s = []
    allr = w_reads()
    tail = [(t - 60, x) for t, x in allr if t >= 60]
    head = [(t, x) for t, x in allr if t < 60]
    for t, (d, b, off) in tail + head:
        if lo <= t < hi:
            s.append(tr(d, b, off, after=t))
    is_tail = [t for t, _ in tail if lo <= t < hi]
    if is_tail:
        s[len(is_tail) - 1].G("wtail")
    return s

def prep_fast(slot):
    ad = BAD3 if slot == 3 else BAD
    base = 0 if slot == 3 else slot * 16384
    s = [rd128(bf(slot, u), ad, base + 64 * u, after=FREE[slot]) for u in range(3)]
    if slot != 2:
        for x in s: x.N("newaddr")
    s[-1].G("addr_used", "info_used")
    return [s]

def dppq(c): return "quad_perm:[%d,%d,%d,%d] row_mask:0xf bank_mask:0xf" % (c, c, c, c)

def prep_interp(slot, four):
    fr = FREE[slot]
    ld, mm, cv = [], [], []
    ld.append(V("v_xor_b32_dpp v%d, v%d, v%d %s" % (A0, INF, CC16, dppq(slot)), rd=[INF, CC16], wr=[A0], dpp=True))
    ld.append(V("v_xor_b32_dpp v%d, v%d, v%d %s" % (A1, INF + 1, CC16, dppq(slot)), rd=[INF + 1, CC16], wr=[A1], dpp=True))
    ld.append(V("v_mov_b32_dpp v%d, v%d %s" % (CB + 3, INF + 2, dppq(slot)), rd=[INF + 2], wr=[CB + 3], dpp=True))
    if four:
        ld.append(V("v_mov_b32_dpp v%d, v%d %s" % (CB + 7, INF + 3, dppq(slot)), rd=[INF + 3], wr=[CB + 7], dpp=True))
    ld[-1].G("addr_used", "info_used", "cb")
    def gset(u, b): return bf(slot, u) if b == 0 else TT + 4 * u
    seq = [(u, 1) for u in range(3)] + [(u, 0) for u in range(3)]
    for (u, b) in seq:
        g = gset(u, b)
        a = fr if b == 0 else None
        ld.append(tr(g, A0, 64 * u + 8 * b, after=a))
        ld.append(tr(g + 2, A1, 64 * u + 8 * b, after=a).G(("g", u, b)))
    pm = []
    for d in range(4):
        pm.append(V("v_perm_b32 v%d, v%d, v%d, v%d" % (CB + d, CB + 3, CB + 3, SEL[d]), rd=[CB + 3, SEL[d]], wr=[CB + d]).N("cb"))
    pm[-1].G("cbA")
    if four:
        for d in range(4):
            pm.append(V("v_perm_b32 v%d, v%d, v%d, v%d" % (CB + 4 + d, CB + 7, CB + 7, SEL[d]), rd=[CB + 7, SEL[d]], wr=[CB + 4 + d]))
        pm[-1].G("cbB")
        pm.append(V("v_bfi_b32 v%d, s%d, v%d, v%d" % (A2, S_FFF, A1, A0), rd=[A0, A1], wr=[A2]))
        pm.append(V("v_bfi_b32 v%d, s%d, v%d, v%d" % (A3, S_FFF, A0, A1), rd=[A0, A1], wr=[A3]).G("a23"))
        for k, (u, b) in enumerate(seq):
            g = TT + 12 + 4 * (k % 3)
            x = tr(g, A2, 64 * u + 8 * b).N("a23")
            if k >= 3: x.N(("mB", k - 3))
            ld.append(x)
            ld.append(tr(g + 2, A3, 64 * u + 8 * b).G(("h", k)))
    if not four:
        for (u, b) in seq:
            g = gset(u, b)
            mm.append(mfma(g, g, CB).N(("g", u, b), "cbA").G(("m", u, b)))
    else:
        for (u, b) in seq:
            g = gset(u, b)
            mm.append(mfma(g, g, CB).N(("g", u, b), "cbA"))
        for k, (u, b) in enumerate(seq):
            g = gset(u, b)
            mm.append(mfma(g, TT + 12 + 4 * (k % 3), CB + 4, g).N(("h", k), "cbB").G(("m", u, b), ("mB", k)))
    for u in range(3):
        B = bf(slot, u); T = TT + 4 * u
        cv.append(V("v_cvt_pk_bf16_f32 v%d, v%d, v%d" % (B, B, B + 1), rd=[B, B + 1], wr=[B]).N(("m", u, 0)))
        cv.append(V("v_cvt_pk_bf16_f32 v%d, v%d, v%d" % (B + 1, B + 2, B + 3), rd=[B + 2, B + 3], wr=[B + 1]))
        cv.append(V("v_cvt_pk_bf16_f32 v%d, v%d, v%d" % (B + 2, T, T + 1), rd=[T, T + 1], wr=[B + 2]).N(("m", u, 1)))
        cv.append(V("v_cvt_pk_bf16_f32 v%d, v%d, v%d" % (B + 3, T + 2, T + 3), rd=[T + 2, T + 3], wr=[B + 3]))
    return [ld, mm, cv, pm]

def fallback_code(slot):
    pre, c = [], []
    pre.append(V("v_subrev_u32 v%d, 6, v%d" % (TT, N6), rd=[N6], wr=[TT]))
    pre.append(V("v_and_b32 v%d, 3, v%d" % (TT + 1, TT), rd=[TT], wr=[TT + 1]))
    pre.append(V("v_and_b32 v%d, 12, v%d" % (TT, TT), rd=[TT], wr=[TT]))
    pre.append(V("v_lshlrev_b32 v%d, 2, v%d" % (TT, TT), rd=[TT], wr=[TT]))
    pre.append(V("v_lshl_or_b32 v%d, v%d, 6, v%d" % (TT, TT + 1, TT), rd=[TT, TT + 1], wr=[TT]))
    for k, d in enumerate([A0, A1, CB + 4, CB + 5]):
        pre.append(I("ds_bpermute_b32 v%d, v%d, v%d offset:%d" % (d, TT, INF + k, 4 * slot), "L", rd=[TT, INF + k], wr=[d], ld=True))
    pre[-1].G("addr_used", "info_used")
    c.append(V("v_sub_u32 v%d, v%d, v%d" % (A2, A1, A0), rd=[A0, A1], wr=[A2]))
    c.append(V("v_and_b32 v%d, 0xff, v%d" % (A2, A2), rd=[A2], wr=[A2]))
    c.append(V("v_add_u32 v%d, v%d, v%d" % (A0, A0, G16), rd=[A0, G16], wr=[A0]))
    c.append(V("v_add_u32 v%d, v%d, v%d" % (A1, A1, G16), rd=[A1, G16], wr=[A1]))
    c.append(V("v_sub_u32 v%d, v%d, v%d" % (A3, A1, A2), rd=[A1, A2], wr=[A3]))
    c.append(V("v_add_u32 v%d, v%d, v%d" % (A2, A0, A2), rd=[A0, A2], wr=[A2]))
    c.append(V("v_lshlrev_b32 v%d, 16, v%d" % (CB, CB + 4), rd=[CB + 4], wr=[CB]))
    c.append(V("v_and_b32 v%d, 0xffff0000, v%d" % (CB + 1, CB + 4), rd=[CB + 4], wr=[CB + 1]))
    c.append(V("v_lshlrev_b32 v%d, 16, v%d" % (CB + 2, CB + 5), rd=[CB + 5], wr=[CB + 2]))
    c.append(V("v_and_b32 v%d, 0xffff0000, v%d" % (CB + 3, CB + 5), rd=[CB + 5], wr=[CB + 3]))
    for u in range(3):
        for k in range(4):
            c.append(I("buffer_load_dwordx4 %s, v%d, s[%d:%d], 0 offen offset:%d" % (vr(TT + 4 * k, 4), A0 + k, SX, SX + 3, 64 * u),
                       "X", rd=[A0 + k], wr=R(TT + 4 * k, 4)))
        for k in range(4):
            c.append(S("s_waitcnt vmcnt(%d)" % (3 - k)))
            for d in range(4):
                g = TT + 4 * k + d
                lo, hi = TT + 16 + 2 * d, TT + 17 + 2 * d
                c.append(V("v_lshlrev_b32 v%d, 16, v%d" % (CB + 6, g), rd=[g], wr=[CB + 6]))
                c.append(V("v_and_b32 v%d, 0xffff0000, v%d" % (CB + 7, g), rd=[g], wr=[CB + 7]))
                if k == 0:
                    c.append(V("v_mul_f32 v%d, v%d, v%d" % (lo, CB, CB + 6), rd=[CB, CB + 6], wr=[lo]))
                    c.append(V("v_mul_f32 v%d, v%d, v%d" % (hi, CB, CB + 7), rd=[CB, CB + 7], wr=[hi]))
                else:
                    c.append(V("v_fmac_f32 v%d, v%d, v%d" % (lo, CB + k, CB + 6), rd=[CB + k, CB + 6, lo], wr=[lo]))
                    c.append(V("v_fmac_f32 v%d, v%d, v%d" % (hi, CB + k, CB + 7), rd=[CB + k, CB + 7, hi], wr=[hi]))
        for d in range(4):
            lo, hi = TT + 16 + 2 * d, TT + 17 + 2 * d
            B = bf(slot, u) + d
            c.append(V("v_cvt_pk_bf16_f32 v%d, v%d, v%d" % (B, lo, hi), rd=[lo, hi], wr=[B]))
    return pre, c

def addr_calc():
    return [
        V("v_add_u32 v%d, s%d, v%d" % (VT, S_KJ, N6), rd=[N6], wr=[VT]).N("tapadv"),
        V("v_lshlrev_b32 v%d, 3, v%d" % (BAD3, VT), rd=[VT], wr=[BAD3]).N("addr_used"),
        V("v_bitop3_b32 v%d, v%d, 32, v%d bitop3:0x6a" % (BAD3, BAD3, G16), rd=[BAD3, G16], wr=[BAD3]),
        V("v_mad_u32_u24 v%d, v%d, s%d, v%d" % (VT, VT, S_192, BAD3), rd=[VT, BAD3], wr=[VT]),
        V("v_add_u32 v%d, s%d, v%d" % (BAD, S_ROW, VT), rd=[VT], wr=[BAD]),
        V("v_add_u32 v%d, s%d, v%d" % (BAD3, S_ROW3, VT), rd=[VT], wr=[BAD3]).G("newaddr"),
    ]
def tap_adv():
    return [
        S("s_add_u32 s%d, s%d, 1" % (S_KJ, S_KJ)),
        S("s_cmp_eq_u32 s%d, 5" % S_KJ),
        S("s_cselect_b32 s%d, 0x1000, 0" % S_T),
        S("s_cselect_b32 s%d, 0, s%d" % (S_KJ, S_KJ)),
        S("s_add_u32 s%d, s%d, s%d" % (S_ROW, S_ROW, S_T)),
        S("s_add_u32 s%d, s%d, s%d" % (S_ROW3, S_ROW3, S_T)).G("tapadv"),
        S("s_add_u32 s%d, s%d, 1" % (S_RING, S_RING)),
        S("s_cmp_eq_u32 s%d, 3" % S_RING),
        S("s_cselect_b32 s%d, 0x%x, 0x%x" % (S_WD, 0, 0)),
        S("s_cselect_b32 s%d, 0, s%d" % (S_RING, S_RING)).G("wd"),
    ]
S_WDM, S_WDP = 44, 45
def salu_seg0():
    s = tap_adv()
    s[8].t = "s_cselect_b32 s%d, s%d, s%d" % (S_WD, S_WDM, S_WDP)
    return s
def wbase_upd():
    s = [V("v_add_u32 v%d, s%d, v%d" % (w, S_WD, w), rd=[w], wr=[w]) for w in WBs]
    s[0].N("wd", "wtail")
    return s
def info_read():
    return [V("v_add_u32 v%d, s%d, v%d" % (VFL, S_PAR, VINFA), rd=[VINFA], wr=[VFL]).N("info_used"),
            rd128(INF, VFL, 0)]
def bar_stream(general):
    s = [S("s_barrier", after=BARPOS - 1, rd=(R(INF, 4) if general else [])).G("bar")]
    return s
def flag_read():
    return [rd32(VFL, VFLA, 0).N("bar"),
            V("v_xor_b32 v%d, 16, v%d" % (VFLA, VFLA), rd=[VFLA], wr=[VFLA]),
            V("v_readfirstlane_b32 s%d, v%d" % (S_FN, VFL), rd=[VFL]).G("fn")]
def flag_upd(after):
    return [S("s_and_b32 s%d, s%d, 0x30" % (S_C, S_F1), after=after).N("fn"),
            S("s_xor_b32 s%d, s%d, 0x1000" % (S_PAR, S_PAR)),
            S("s_mov_b32 s%d, s%d" % (S_F1, S_FN)),
            S("s_or_b32 s%d, s%d, s%d" % (S_COMB, S_C, S_FN)),
            S("s_cmp_eq_u32 s%d, 0" % S_COMB).G("end")]

ALLLD = set(R(AF, 72) + R(BF, 48) + R(INF, 4) + [VFL])

def build_fast():
    m = main_mfmas()
    st = []
    p2 = prep_fast(2)[0]
    st.append(p2)
    st.append(w_stream(0, 60))
    st.append(salu_seg0() + bar_stream(False) + flag_upd(50))
    st.append(addr_calc() + wbase_upd())
    st.append(prep_fast(0)[0] + prep_fast(3)[0] + prep_fast(1)[0])
    st.append(flag_read())
    return schedule(m, st, 0, pend_hint=ALLLD)

def build_seg(k, mode, pro=False):
    lo, hi, slot = SEGS[k]
    m = [] if pro else main_mfmas()[lo:hi]
    st = []
    post = []
    if mode == 0: pr = prep_fast(slot)
    elif mode == 1: pr = prep_interp(slot, False)
    elif mode == 2: pr = prep_interp(slot, True)
    else:
        pre, post = fallback_code(slot); pr = [pre]
    pre_given = []
    if k != 0:
        for s in pr:
            for x in s: x.need.discard("newaddr")
    ws = w_stream(lo, hi)
    if pro:
        for s in pr + [ws]:
            for x in s: x.after = None
    st.append(pr[0])
    st.append(ws)
    st += pr[1:]
    if not pro:
        if k == 0:
            st.append(salu_seg0())
            st.append(info_read())
            st.append(addr_calc() + wbase_upd())
        if k == 2:
            st.append(bar_stream(True))
            fr = flag_read()
            st.append(fr)
        if k == 3:
            fu = flag_upd(None)
            fu[0].need.discard("fn")
            st.append(fu)
    cap = 2 if mode == 0 else 3
    b = schedule(m, st, lo, pend_hint=ALLLD, vec_cap=cap)
    return b + post

blocks = {}
blocks["FAST"] = build_fast()
for k in range(4):
    for mode in range(4):
        blocks["G%d_%d" % (k, mode)] = build_seg(k, mode)
for k in range(1, 4):
    for mode in range(4):
        blocks["P%d_%d" % (k, mode)] = build_seg(k, mode, pro=True)
preds = {}
G = lambda k: ["G%d_%d" % (k, m) for m in range(4)]
P = lambda k: ["P%d_%d" % (k, m) for m in range(4)]
for n in P(1): preds[n] = []
for k in (2, 3):
    for n in P(k): preds[n] = P(k - 1)
for n in ["FAST"] + G(0): preds[n] = P(3) + ["FAST"] + G(3)
for k in (1, 2, 3):
    for n in G(k): preds[n] = G(k - 1)
exits = {n: {} for n in blocks}
final = {}
for it in range(6):
    changed = False
    for n in blocks:
        ent = merge_states([exits[p] for p in preds[n]])
        b, ex = lgkm_pass(blocks[n], ent)
        final[n] = b
        mx = merge_states([exits[n], ex])
        if mx != exits[n]:
            exits[n] = mx; changed = True
    if not changed: break
assert not changed
hz = {}
for n in blocks:
    hz[n] = hazard_pass(final[n], prev=[final[p][-9:] for p in preds[n]])
EXIT_STATE = merge_states([exits["FAST"]] + [exits[n] for n in G(3)])

def stats(n):
    b = hz[n]
    from collections import Counter
    return n, len(b), dict(Counter(i.k for i in b))

E("; @launch grid=(256,1,1) block=(512,1,1) lds=%d" % LDS_TOTAL)
E('.amdgcn_target "amdgcn-amd-amdhsa--gfx950"')
E(".text")
E(".globl %s_kernel" % NAME)
E(".p2align 8")
E(".type %s_kernel,@function" % NAME)
E("%s_kernel:" % NAME)
def A(s):
    for line in s.strip("\n").split("\n"):
        E("    " + line.strip() if not line.strip().endswith(":") else line.strip())

def stamp(idx):
    if DIAG:
        A("s_memtime s[%d:%d]" % (80 + 2 * idx, 81 + 2 * idx))

stamp(0)
if DIAG: A("s_memrealtime s[90:91]")
A(f"""
s_load_dwordx8 s[64:71], s[0:1], 0
s_cmp_ge_u32 s2, 256
s_cbranch_scc1 L_end
s_and_b32 s3, s2, 7
s_lshl_b32 s3, s3, 5
s_lshr_b32 s29, s2, 3
s_add_u32 s3, s3, s29
s_cmp_ge_u32 s3, 252
s_cbranch_scc1 L_end
v_lshrrev_b32 v1, 6, v0
v_and_b32 v0, 63, v0
s_mul_i32 s29, s3, 3641
v_readfirstlane_b32 s{S_WID}, v1
s_lshr_b32 s29, s29, 16
s_lshl_b32 s{S_C0}, s29, 4
s_mul_i32 s29, s29, 18
s_sub_u32 s29, s3, s29
s_mul_i32 s{S_R0}, s29, 13
s_sub_u32 s{S_H}, 224, s{S_R0}
s_min_u32 s{S_H}, s{S_H}, 13
s_min_u32 s{S_MT}, s{S_R0}, 1
s_min_u32 s{S_ML}, s{S_C0}, 1
s_sub_i32 s{S_A0}, s{S_R0}, s{S_MT}
s_sub_i32 s{S_A0}, s{S_A0}, 2
s_sub_i32 s{S_B0}, s{S_C0}, s{S_ML}
s_sub_i32 s{S_B0}, s{S_B0}, 2
s_and_b32 s{S_W}, s{S_WID}, 3
s_mov_b32 s{SX+2}, 9633792
s_mov_b32 s{SX+3}, 0x00020000
s_mov_b32 s{SO+2}, 5017600
s_mov_b32 s{SO+3}, 0x00020000
s_mov_b32 s{SW+2}, 460800
s_mov_b32 s{SW+3}, 0x00020000
s_mov_b32 s{SD+2}, 9633792
s_mov_b32 s{SD+3}, 0x00020000
""")
for m in range(3):
    A(f"""
s_add_u32 s29, s{S_WID}, {8*m}
s_lshl_b32 s29, s29, 6
v_add_u32 v2, s29, v0
v_mul_u32_u24 v3, 5243, v2
v_lshrrev_b32 v3, 19, v3
v_mul_u32_u24 v4, 100, v3
v_sub_u32 v4, v2, v4
v_add_u32 v3, s{S_R0}, v3
v_min_u32 v3, 223, v3
v_mul_u32_u24 v3, 22400, v3
v_lshl_add_u32 v{10+m}, v4, 4, v3
""")
A(f"""
s_lshl_b32 s29, s{S_W}, 6
v_add_u32 v2, s29, v0
v_mul_u32_u24 v3, 171, v2
v_lshrrev_b32 v3, 11, v3
v_mul_u32_u24 v4, 12, v3
v_sub_u32 v4, v2, v4
v_add_u32 v3, s{S_B0}, v3
v_lshrrev_b32 v5, 1, v3
v_and_b32 v5, 2, v5
v_xor_b32 v4, v4, v5
v_max_i32 v3, 0, v3
v_min_i32 v3, 223, v3
v_mul_u32_u24 v3, 192, v3
v_lshl_add_u32 v13, v4, 4, v3
s_waitcnt lgkmcnt(0)
s_mov_b32 s{SX}, s64
s_and_b32 s{SX+1}, s65, 0xffff
s_mov_b32 s{SO}, s66
s_and_b32 s{SO+1}, s67, 0xffff
s_mov_b32 s{SW}, s68
s_and_b32 s{SW+1}, s69, 0xffff
s_mov_b32 s{SD}, s70
s_and_b32 s{SD+1}, s71, 0xffff
s_mul_i32 s46, s{S_C0}, 100
s_lshl_b32 s47, s{S_WID}, 10
s_add_u32 s47, s47, {OFFB}
s_mov_b32 m0, s47
s_add_u32 s47, s47, 8192
buffer_load_dwordx4 v10, s[{SO}:{SO+3}], s46 offen lds
s_mov_b32 m0, s47
s_add_u32 s47, s47, 8192
buffer_load_dwordx4 v11, s[{SO}:{SO+3}], s46 offen lds
s_cmp_ge_u32 s{S_WID}, 5
s_cbranch_scc1 L_no3rd
s_mov_b32 m0, s47
s_nop 0
buffer_load_dwordx4 v12, s[{SO}:{SO+3}], s46 offen lds
L_no3rd:
s_lshr_b32 s46, s{S_WID}, 2
s_lshl_b32 s47, s46, 12
s_lshl_b32 s48, s{S_W}, 10
s_add_u32 s47, s47, s48
s_add_i32 s46, s46, s{S_A0}
""")
for m in range(9):
    A(f"""
s_max_i32 s48, s46, 0
s_min_i32 s48, s48, 223
s_mul_i32 s48, s48, 43008
s_mov_b32 m0, s47
s_add_u32 s47, s47, 8192
buffer_load_dwordx4 v13, s[{SX}:{SX+3}], s48 offen lds
s_add_i32 s46, s46, 2
""")
A(f"""
s_cmp_ge_u32 s{S_WID}, 4
s_cbranch_scc1 L_helper
""")

A(f"""
s_setprio 3
v_lshrrev_b32 v20, 4, v0
v_and_b32 v21, 15, v0
v_bfe_u32 v22, v0, 2, 2
v_and_b32 v23, 3, v0
v_add_u32 v{N6}, 6, v21
v_lshlrev_b32 v{G16}, 4, v20
v_lshlrev_b32 v{CC16}, 4, v23
v_lshlrev_b32 v24, 4, v0
s_lshl_b32 s29, s{S_W}, 10
s_add_u32 s29, s29, {INFB}
v_add_u32 v{VINFA}, s29, v24
s_lshl_b32 s29, s{S_W}, 2
s_add_u32 s29, s29, {FLB}
v_mov_b32 v{VFLA}, s29
v_mul_u32_u24 v24, 1568, v20
v_mul_u32_u24 v25, 192, v22
v_lshlrev_b32 v26, 3, v23
v_add3_u32 v24, v24, v25, v26
v_add_u32 v24, {WB}, v24
s_cmp_eq_u32 s{S_W}, 3
s_cselect_b32 s46, 0, s{S_W}
s_lshl_b32 s47, s46, 6
v_add_u32 v{WBs[0]}, s47, v24
s_add_u32 s47, s47, 64
s_cmp_eq_u32 s47, 192
s_cselect_b32 s47, 0, s47
v_add_u32 v{WBs[1]}, s47, v24
s_add_u32 s47, s47, 64
s_cmp_eq_u32 s47, 192
s_cselect_b32 s47, 0, s47
v_add_u32 v{WBs[2]}, s47, v24
""")
A(f"""
v_and_b32 v25, 1, v22
v_lshrrev_b32 v26, 1, v22
v_mov_b32 v27, 0x0c0c0100
v_mov_b32 v28, 0x01000c0c
v_cmp_eq_u32 vcc, 1, v25
v_mov_b32 v29, 0x0c0c0302
v_mov_b32 v30, 0x03020c0c
v_cndmask_b32 v27, v27, v28, vcc
v_cndmask_b32 v29, v29, v30, vcc
v_cmp_eq_u32 s[46:47], v23, v20
v_cmp_eq_u32 s[48:49], 0, v26
v_mov_b32 v28, 0x0c0c0c0c
s_and_b64 s[50:51], s[46:47], s[48:49]
s_andn2_b64 s[52:53], s[46:47], s[48:49]
v_cndmask_b32 v{SEL[0]}, v28, v27, s[50:51]
v_cndmask_b32 v{SEL[1]}, v28, v27, s[52:53]
v_cndmask_b32 v{SEL[2]}, v28, v29, s[50:51]
v_cndmask_b32 v{SEL[3]}, v28, v29, s[52:53]
s_mov_b32 s{S_192}, 192
s_mov_b32 s{S_FFF}, 0xfff
s_mov_b32 s{S_WDM}, {(-2*WSLOT) & 0xffffffff}
s_mov_b32 s{S_WDP}, {WSLOT}
s_mov_b32 s{S_KJ}, 0
s_mov_b32 s{S_RING}, 0
s_sub_i32 s46, s{S_ML}, 6
s_mul_i32 s46, s46, 192
s_lshl_b32 s47, s{S_MT}, 12
s_add_i32 s46, s46, s47
s_add_i32 s{S_ROW3}, s46, {12*4096}
s_lshl_b32 s47, s{S_W}, 12
s_add_i32 s{S_ROW}, s46, s47
""")
for r in range(ACC, 256):
    A("v_mov_b32 v%d, 0" % r)
for x in addr_calc(): A(x.t)
A(f"""
s_cmp_ge_u32 s{S_WID}, 5
s_waitcnt vmcnt(9)
s_barrier
s_barrier
ds_read_b32 v{VFL}, v{VFLA}
ds_read_b32 v{VT}, v{VFLA} offset:16
ds_read_b128 {vr(INF,4)}, v{VINFA}
s_mov_b32 s{S_PAR}, 0x1000
s_waitcnt lgkmcnt(0)
v_readfirstlane_b32 s{S_T2}, v{VFL}
v_readfirstlane_b32 s{S_F1}, v{VT}
s_waitcnt vmcnt(0)
""")
stamp(1)
A("s_barrier")
stamp(2)
def dispatch(prefix, k, sreg, slot, nxt):
    A(f"s_bfe_u32 s{S_T}, s{sreg}, 0x2000{2*slot}")
    A(f"s_cmp_lg_u32 s{S_T}, 0")
    A(f"s_cbranch_scc1 L_{prefix}{k}_d")
    EB(hz["%s%d_0" % (prefix, k)])
    E(f"L_{prefix}{k}_end:")
def slow_variants(prefix, k):
    E(f"L_{prefix}{k}_d:")
    A(f"s_cmp_eq_u32 s{S_T}, 2")
    A(f"s_cbranch_scc1 L_{prefix}{k}_2")
    A(f"s_cmp_eq_u32 s{S_T}, 3")
    A(f"s_cbranch_scc1 L_{prefix}{k}_3")
    for mode in (1, 2, 3):
        E(f"L_{prefix}{k}_{mode}:")
        EB(hz["%s%d_%d" % (prefix, k, mode)])
        A(f"s_branch L_{prefix}{k}_end")
for k in (1, 2, 3):
    dispatch("P", k, S_T2, SEGS[k][2], None)
A(f"""
s_and_b32 s{S_C}, s{S_T2}, 0x30
s_or_b32 s{S_COMB}, s{S_C}, s{S_F1}
s_cmp_lg_u32 s{S_COMB}, 0
s_cbranch_scc1 L_general
""")
E(".p2align 6")
E("L_fast:")
EB(hz["FAST"])
A("s_cbranch_scc1 L_fast")
E("L_general:")
A(f"""
s_bitcmp1_b32 s{S_COMB}, 8
s_cbranch_scc1 L_epi
""")
dispatch("G", 0, S_C, 2, None)
dispatch("G", 1, S_F1, 0, None)
dispatch("G", 2, S_F1, 3, None)
dispatch("G", 3, S_F1, 1, None)
A(f"""
s_cmp_eq_u32 s{S_COMB}, 0
s_cbranch_scc1 L_fast
s_branch L_general
""")
for k in range(4): slow_variants("G", k)
for k in (1, 2, 3): slow_variants("P", k)

E("L_epi:")
stamp(3)
A(f"""
s_waitcnt lgkmcnt(0)
v_subrev_u32 v20, 6, v{N6}
v_mul_u32_u24 v20, 192, v20
v_lshrrev_b32 v21, 1, v{G16}
v_and_b32 v21, 16, v21
v_lshlrev_b32 v22, 1, v{G16}
v_and_b32 v22, 32, v22
v_add3_u32 v20, v20, v21, v22
s_cmp_eq_u32 s{S_W}, 3
s_cselect_b32 s46, 0, s{S_W}
s_lshl_b32 s46, s46, 6
v_add_u32 v21, s46, v20
s_add_u32 s46, s46, 64
s_cmp_eq_u32 s46, 192
s_cselect_b32 s46, 0, s46
v_add_u32 v22, s46, v20
s_add_u32 s46, s46, 64
s_cmp_eq_u32 s46, 192
s_cselect_b32 s46, 0, s46
v_add_u32 v23, s46, v20
s_mul_i32 s47, s{S_C0}, 192
s_nop 4
""")
tcur = [0]
for slot in range(4):
    if slot < 3:
        A(f"s_add_u32 s46, s{S_W}, {4*slot}")
    else:
        A(f"s_cmp_eq_u32 s{S_W}, 3")
        A(f"s_cselect_b32 s46, 13, 12")
    A(f"""
s_cmp_ge_u32 s46, s{S_H}
s_cbranch_scc1 L_skip{slot}
s_add_u32 s46, s46, s{S_R0}
s_mul_i32 s46, s46, 43008
s_add_u32 s46, s46, s47
""")
    for p in range(3 if slot < 3 else 1):
        t = 32 + 4 * ((slot * 3 + p) % 10)
        e, o = acc(slot, 2 * p), acc(slot, 2 * p + 1)
        A(f"""
v_cvt_pk_bf16_f32 v{t}, v{e}, v{e+1}
v_cvt_pk_bf16_f32 v{t+1}, v{e+2}, v{e+3}
v_cvt_pk_bf16_f32 v{t+2}, v{o}, v{o+1}
v_cvt_pk_bf16_f32 v{t+3}, v{o+2}, v{o+3}
s_nop 1
v_permlane16_swap_b32 v{t}, v{t+2}
v_permlane16_swap_b32 v{t+1}, v{t+3}
buffer_store_dwordx4 v[{t}:{t+3}], v{21+p}, s[{SD}:{SD+3}], s46 offen
""")
    E(f"L_skip{slot}:")
if DIAG:
    A("s_waitcnt vmcnt(0)")
    stamp(4)
    A("s_memrealtime s[92:93]")
    A(f"""
s_load_dwordx2 s[72:73], s[0:1], 32
v_mov_b32 v20, 0
s_waitcnt lgkmcnt(0)
s_not_b32 s90, s90
s_sub_u32 s88, s88, s80
s_sub_u32 s86, s86, s84
s_sub_u32 s82, s82, s80
s_not_b32 s94, s82
s_not_b32 s96, s86
s_mov_b64 exec, 1
""")
    for i, r in enumerate([92, 90, 88, 82, 86, 94, 96]):
        A(f"v_mov_b32 v21, s{r}")
        A(f"global_atomic_umax v20, v21, s[72:73] offset:{4*i}")
A("s_endpgm")

H_TAU, H_KJ, H_WS, H_WL, H_FLG, H_PAR, H_C223 = 30, 31, 32, 33, 34, 35, 36
H_VAL, H_SLOW, H_BOTH, H_OOB, H_TMP, H_M0, H_GM = 38, 40, 42, 44, 46, 48, 50
H_S1, H_S2, H_RING = 52, 53, 54
BY, BX, OFA, IFA, FLA, WV, D = 1, 2, 3, 4, 5, 6, 7
E("L_helper:")
A(f"""
v_lshlrev_b32 v{WV}, 4, v0
s_mul_i32 s{H_WS}, s{S_W}, {3*1536}
s_mul_i32 s{H_WL}, s{S_W}, {3*1568}
s_add_u32 s{H_WL}, s{H_WL}, {WB}
s_mov_b32 s{H_RING}, 0
""")
def w_issue():
    A("s_mov_b32 exec_hi, 0xffff")
    for m in range(3):
        A(f"""
s_add_u32 s{H_S1}, s{H_WL}, {m*1568}
s_mov_b32 m0, s{H_S1}
s_add_u32 s{H_S2}, s{H_WS}, {m*1536}
buffer_load_dwordx4 v{WV}, s[{SW}:{SW+3}], s{H_S2} offen lds
buffer_load_dwordx4 v{WV}, s[{SW}:{SW+3}], s{H_S2} offen offset:768 lds
""")
    A(f"""
s_mov_b32 exec_hi, -1
s_add_u32 s{H_WS}, s{H_WS}, 18432
s_cmp_ge_u32 s{H_WS}, 460800
s_cselect_b32 s{H_S1}, 460800, 0
s_sub_u32 s{H_WS}, s{H_WS}, s{H_S1}
s_add_u32 s{H_RING}, s{H_RING}, 1
s_cmp_eq_u32 s{H_RING}, 3
s_cselect_b32 s{H_S1}, {3*WSLOT}, 0
s_cselect_b32 s{H_RING}, 0, s{H_RING}
s_add_u32 s{H_WL}, s{H_WL}, {WSLOT}
s_sub_u32 s{H_WL}, s{H_WL}, s{H_S1}
""")
w_issue()
w_issue()
A(f"""
v_lshrrev_b32 v20, 4, v0
v_bfe_u32 v22, v0, 2, 2
v_and_b32 v23, 3, v0
v_lshl_add_u32 v20, v22, 2, v20
v_lshlrev_b32 v21, 2, v23
v_add_u32 v21, s{S_W}, v21
v_min_u32 v21, 12, v21
v_cmp_gt_u32 s[{H_VAL}:{H_VAL+1}], s{S_H}, v21
v_lshl_add_u32 v{OFA}, v21, 4, v20
v_mul_u32_u24 v{OFA}, 100, v{OFA}
v_add_u32 v{OFA}, {OFFB}, v{OFA}
v_add_u32 v21, s{S_R0}, v21
v_add_u32 v20, s{S_C0}, v20
v_cvt_f32_u32 v{BY}, v21
v_cvt_f32_u32 v{BX}, v20
v_add_f32 v{BY}, -2.0, v{BY}
v_add_f32 v{BX}, -2.0, v{BX}
s_lshl_b32 s29, s{S_W}, 10
s_add_u32 s29, s29, {INFB}
v_add_u32 v{IFA}, s29, v{WV}
s_lshl_b32 s29, s{S_W}, 2
s_add_u32 s29, s29, {FLB}
v_mov_b32 v{FLA}, s29
s_mov_b32 s{H_TAU}, 0
s_mov_b32 s{H_KJ}, 0
s_mov_b32 s{H_PAR}, 0
s_mov_b32 s{H_C223}, 0x435f435f
s_mov_b32 s{H_M0}, 0x11111111
s_mov_b32 s{H_M0+1}, 0x11111111
s_waitcnt vmcnt(21)
s_barrier
ds_read_b32 v{D}, v{OFA}
L_hloop:
s_cmp_lt_u32 s{H_TAU}, 2
s_cbranch_scc1 L_hnow
""")
w_issue()
A(f"""
L_hnow:
s_mov_b32 s{H_FLG}, 0
s_cmp_eq_u32 s{H_TAU}, 26
s_cselect_b32 s{H_FLG}, 0x100, 0
s_cmp_ge_u32 s{H_TAU}, 25
s_cbranch_scc1 L_hflags
s_waitcnt lgkmcnt(0)
v_lshlrev_b32 v10, 16, v{D}
v_and_b32 v11, 0xffff0000, v{D}
v_add_u32 v{OFA}, 4, v{OFA}
v_add_f32 v10, v{BY}, v10
v_add_f32 v11, v{BX}, v11
ds_read_b32 v{D}, v{OFA}
v_cvt_pk_bf16_f32 v12, v{BY}, v{BX}
v_cvt_pk_bf16_f32 v10, v10, v11
v_pk_max_i16 v12, v12, 0
v_pk_max_i16 v10, v10, 0
v_pk_min_i16 v12, v12, s{H_C223}
v_pk_min_i16 v10, v10, s{H_C223}
s_add_u32 s{H_KJ}, s{H_KJ}, 1
s_cmp_eq_u32 s{H_KJ}, 5
s_cselect_b32 s{H_S1}, 0xc0800000, 1.0
s_cselect_b32 s{H_S2}, 1.0, 0
s_cselect_b32 s{H_KJ}, 0, s{H_KJ}
v_cmp_ne_u32 vcc, v10, v12
v_add_f32 v{BX}, s{H_S1}, v{BX}
v_add_f32 v{BY}, s{H_S2}, v{BY}
s_and_b64 s[{H_SLOW}:{H_SLOW+1}], vcc, s[{H_VAL}:{H_VAL+1}]
s_cbranch_scc0 L_hflags
v_lshlrev_b32 v11, 16, v10
v_and_b32 v12, 0xffff0000, v10
v_floor_f32 v13, v11
v_floor_f32 v14, v12
v_ceil_f32 v15, v11
v_ceil_f32 v16, v12
v_sub_f32 v11, v11, v13
v_sub_f32 v12, v12, v14
v_cvt_i32_f32 v13, v13
v_cvt_i32_f32 v14, v14
v_cvt_i32_f32 v15, v15
v_cvt_i32_f32 v16, v16
v_sub_f32 v17, 1.0, v11
v_sub_f32 v18, 1.0, v12
v_cmp_ne_u32 vcc, v13, v15
v_cmp_ne_u32 s[{H_TMP}:{H_TMP+1}], v14, v16
v_cvt_pk_bf16_f32 v17, v17, v18
s_and_b64 vcc, vcc, s[{H_TMP}:{H_TMP+1}]
v_and_b32 v18, 0xffff0000, v17
v_lshlrev_b32 v17, 16, v17
s_and_b64 s[{H_BOTH}:{H_BOTH+1}], vcc, s[{H_VAL}:{H_VAL+1}]
v_mul_f32 v20, v17, v18
v_mul_f32 v21, v11, v12
v_mul_f32 v22, v17, v12
v_mul_f32 v23, v11, v18
v_add_f32 v24, v11, v12
v_cndmask_b32 v21, v24, v21, vcc
v_cndmask_b32 v22, 0, v22, vcc
v_cndmask_b32 v23, 0, v23, vcc
v_cvt_pk_bf16_f32 v30, v20, v21
v_cvt_pk_bf16_f32 v31, v22, v23
v_subrev_u32 v20, s{S_A0}, v13
v_subrev_u32 v21, s{S_B0}, v14
v_subrev_u32 v22, s{S_A0}, v15
v_subrev_u32 v23, s{S_B0}, v16
v_min_i32 v24, v20, v21
v_add_u32 v25, 3, v22
v_max_i32 v25, v25, v23
v_cmp_gt_i32 vcc, 0, v24
v_cmp_lt_i32 s[{H_TMP}:{H_TMP+1}], 20, v25
v_mul_u32_u24 v21, 192, v21
v_mul_u32_u24 v23, 192, v23
s_or_b64 vcc, vcc, s[{H_TMP}:{H_TMP+1}]
v_lshl_add_u32 v28, v20, 12, v21
v_lshl_add_u32 v29, v22, 12, v23
v_lshlrev_b32 v20, 3, v14
v_lshlrev_b32 v22, 3, v16
v_and_or_b32 v28, v20, 32, v28
v_and_or_b32 v29, v22, 32, v29
s_mov_b64 s[{H_GM}:{H_GM+1}], 0
s_and_b64 s[{H_OOB}:{H_OOB+1}], vcc, s[{H_VAL}:{H_VAL+1}]
""")
for c in range(4):
    A(f"""
s_lshl_b64 s[56:57], s[{H_M0}:{H_M0+1}], {c}
s_and_b64 s[{H_TMP}:{H_TMP+1}], s[56:57], s[{H_SLOW}:{H_SLOW+1}]
s_cselect_b32 s{H_S1}, {1 << (2*c)}, 0
s_and_b64 s[{H_TMP}:{H_TMP+1}], s[56:57], s[{H_BOTH}:{H_BOTH+1}]
s_cselect_b32 s{H_S1}, {2 << (2*c)}, s{H_S1}
s_and_b64 s[{H_TMP}:{H_TMP+1}], s[56:57], s[{H_OOB}:{H_OOB+1}]
s_cselect_b32 s{H_S1}, {3 << (2*c)}, s{H_S1}
s_cselect_b64 s[56:57], s[56:57], 0
s_or_b32 s{H_FLG}, s{H_FLG}, s{H_S1}
s_or_b64 s[{H_GM}:{H_GM+1}], s[{H_GM}:{H_GM+1}], s[56:57]
""")
A(f"""
s_cbranch_scc0 L_hnog
v_mul_u32_u24 v14, 192, v14
v_mul_u32_u24 v16, 192, v16
v_mul_u32_u24 v13, 43008, v13
v_mul_u32_u24 v15, 43008, v15
v_add_u32 v13, v13, v14
v_add_u32 v15, v15, v16
v_cndmask_b32 v28, v28, v13, s[{H_GM}:{H_GM+1}]
v_cndmask_b32 v29, v29, v15, s[{H_GM}:{H_GM+1}]
L_hnog:
v_add_u32 v20, s{H_PAR}, v{IFA}
ds_write_b128 v20, v[28:31]
L_hflags:
v_mov_b32 v21, s{H_FLG}
ds_write_b32 v{FLA}, v21
v_xor_b32 v{FLA}, 16, v{FLA}
s_xor_b32 s{H_PAR}, s{H_PAR}, 0x1000
s_add_u32 s{H_TAU}, s{H_TAU}, 1
s_cmp_eq_u32 s{H_TAU}, 1
s_cbranch_scc1 L_hloop
s_cmp_gt_u32 s{H_TAU}, 2
s_cbranch_scc1 L_hsteady
s_waitcnt lgkmcnt(0)
s_barrier
s_waitcnt vmcnt(6)
s_barrier
s_branch L_hloop
L_hsteady:
s_waitcnt vmcnt(6) lgkmcnt(0)
s_barrier
s_cmp_le_u32 s{H_TAU}, 26
s_cbranch_scc1 L_hloop
s_waitcnt vmcnt(0)
L_end:
s_endpgm
""")
E('.section .rodata,"a"')
E(".p2align 6")
E(".amdhsa_kernel %s_kernel" % NAME)
E("  .amdhsa_next_free_vgpr 256")
E("  .amdhsa_next_free_sgpr 102")
E("  .amdhsa_accum_offset 256")
E("  .amdhsa_group_segment_fixed_size 0")
E("  .amdhsa_kernarg_size 48")
E("  .amdhsa_user_sgpr_count 2")
E("  .amdhsa_user_sgpr_kernarg_segment_ptr 1")
E("  .amdhsa_system_sgpr_workgroup_id_x 1")
E("  .amdhsa_float_denorm_mode_32 3")
E(".end_amdhsa_kernel")
open(OUT, "w").write("\n".join(L) + "\n")
for n in hz: print(*stats(n))
```

```python
import sys
from sched import *

NAME = "standalone__deformable_dcnv1__vision"
DIAG = "--diag" in sys.argv
OUT = [a for a in sys.argv[1:] if not a.startswith("--")][0]

XROWS = 18
XB = 0
WB = XROWS * 4096
WSLOT = 18816
OFFB = WB + 3 * WSLOT
INFB = OFFB + 21 * 1024
FLB = INFB + 8192
LDS_TOTAL = FLB + 64
assert FLB % 32 == 0 and LDS_TOTAL <= 163840

ACC = 176
AF = 104
BF = 56
TT = 32
CB = 24
INF = 20
A0, A1, A2, A3 = 16, 17, 18, 19
VFL = 15
WBs = [0, 1, 2]
BAD, BAD3, N6, G16, CC16 = 3, 4, 5, 6, 7
SEL = [8, 9, 10, 11]
VINFA, VFLA = 12, 13
VT = 14
def acc(slot, i): return ACC + (slot * 6 + i) * 4 if slot < 3 else ACC + 72 + i * 4
def af(u, i): return AF + (u * 6 + i) * 4
def bf(slot, u): return BF + slot * 12 + u * 4

SX, SO, SW, SD = 4, 8, 12, 16
S_WID, S_W, S_R0, S_C0, S_H, S_A0, S_B0, S_MT, S_ML = 20, 21, 22, 23, 24, 25, 26, 27, 28
S_KJ, S_ROW, S_ROW3, S_RING, S_WD, S_T, S_FN, S_F1, S_C, S_COMB, S_PAR, S_192, S_FFF = range(30, 43)
S_T2 = 43

L = []
def E(x): L.append(x)
def EB(block):
    for i in block: E("    " + i.t)

ORDER = [0, 3, 1, 2]
def main_mfmas():
    m = []
    for slot in ORDER:
        for u in range(3):
            for i in range(6 if slot < 3 else 2):
                m.append(mfma(acc(slot, i), af(u, i), bf(slot, u), acc(slot, i)))
    return m
NPOS = 60
FREE = {0: 17, 3: 23, 1: 41, 2: -1}
SEGS = [(0, 15, 2), (15, 30, 0), (30, 45, 3), (45, 60, 1)]
BARPOS = 30

def w_reads():
    res = []
    for q in range(18):
        u, i = divmod(q, 6)
        tq = 42 + int(q * 1.45)
        for sec in range(2):
            res.append((tq + (sec if q % 2 else 0), (af(u, i) + 2 * sec, WBs[i // 2], u * 6272 + sec * 768 + 32 * (i % 2))))
    return res
def w_stream(lo, hi):
    s = []
    allr = w_reads()
    tail = [(t - 60, x) for t, x in allr if t >= 60]
    head = [(t, x) for t, x in allr if t < 60]
    for t, (d, b, off) in tail + head:
        if lo <= t < hi:
            s.append(tr(d, b, off, after=t))
    is_tail = [t for t, _ in tail if lo <= t < hi]
    if is_tail:
        s[len(is_tail) - 1].G("wtail")
    return s

def prep_fast(slot):
    ad = BAD3 if slot == 3 else BAD
    base = 0 if slot == 3 else slot * 16384
    s = [rd128(bf(slot, u), ad, base + 64 * u, after=FREE[slot]) for u in range(3)]
    if slot != 2:
        for x in s: x.N("newaddr")
    s[-1].G("addr_used", "info_used")
    return [s]

def dppq(c): return "quad_perm:[%d,%d,%d,%d] row_mask:0xf bank_mask:0xf" % (c, c, c, c)

def prep_interp(slot, four):
    fr = FREE[slot]
    ld, mm, cv = [], [], []
    ld.append(V("v_xor_b32_dpp v%d, v%d, v%d %s" % (A0, INF, CC16, dppq(slot)), rd=[INF, CC16], wr=[A0], dpp=True))
    ld.append(V("v_xor_b32_dpp v%d, v%d, v%d %s" % (A1, INF + 1, CC16, dppq(slot)), rd=[INF + 1, CC16], wr=[A1], dpp=True))
    ld.append(V("v_mov_b32_dpp v%d, v%d %s" % (CB + 3, INF + 2, dppq(slot)), rd=[INF + 2], wr=[CB + 3], dpp=True))
    if four:
        ld.append(V("v_mov_b32_dpp v%d, v%d %s" % (CB + 7, INF + 3, dppq(slot)), rd=[INF + 3], wr=[CB + 7], dpp=True))
    ld[-1].G("addr_used", "info_used", "cb")
    def gset(u, b): return bf(slot, u) if b == 0 else TT + 4 * u
    seq = [(u, 1) for u in range(3)] + [(u, 0) for u in range(3)]
    for (u, b) in seq:
        g = gset(u, b)
        a = fr if b == 0 else None
        ld.append(tr(g, A0, 64 * u + 8 * b, after=a))
        ld.append(tr(g + 2, A1, 64 * u + 8 * b, after=a).G(("g", u, b)))
    pm = []
    for d in range(4):
        pm.append(V("v_perm_b32 v%d, v%d, v%d, v%d" % (CB + d, CB + 3, CB + 3, SEL[d]), rd=[CB + 3, SEL[d]], wr=[CB + d]).N("cb"))
    pm[-1].G("cbA")
    if four:
        for d in range(4):
            pm.append(V("v_perm_b32 v%d, v%d, v%d, v%d" % (CB + 4 + d, CB + 7, CB + 7, SEL[d]), rd=[CB + 7, SEL[d]], wr=[CB + 4 + d]))
        pm[-1].G("cbB")
        pm.append(V("v_bfi_b32 v%d, s%d, v%d, v%d" % (A2, S_FFF, A1, A0), rd=[A0, A1], wr=[A2]))
        pm.append(V("v_bfi_b32 v%d, s%d, v%d, v%d" % (A3, S_FFF, A0, A1), rd=[A0, A1], wr=[A3]).G("a23"))
        for k, (u, b) in enumerate(seq):
            g = TT + 12 + 4 * (k % 3)
            x = tr(g, A2, 64 * u + 8 * b).N("a23")
            if k >= 3: x.N(("mB", k - 3))
            ld.append(x)
            ld.append(tr(g + 2, A3, 64 * u + 8 * b).G(("h", k)))
    if not four:
        for (u, b) in seq:
            g = gset(u, b)
            mm.append(mfma(g, g, CB).N(("g", u, b), "cbA").G(("m", u, b)))
    else:
        for (u, b) in seq:
            g = gset(u, b)
            mm.append(mfma(g, g, CB).N(("g", u, b), "cbA"))
        for k, (u, b) in enumerate(seq):
            g = gset(u, b)
            mm.append(mfma(g, TT + 12 + 4 * (k % 3), CB + 4, g).N(("h", k), "cbB").G(("m", u, b), ("mB", k)))
    for u in range(3):
        B = bf(slot, u); T = TT + 4 * u
        cv.append(V("v_cvt_pk_bf16_f32 v%d, v%d, v%d" % (B, B, B + 1), rd=[B, B + 1], wr=[B]).N(("m", u, 0)))
        cv.append(V("v_cvt_pk_bf16_f32 v%d, v%d, v%d" % (B + 1, B + 2, B + 3), rd=[B + 2, B + 3], wr=[B + 1]))
        cv.append(V("v_cvt_pk_bf16_f32 v%d, v%d, v%d" % (B + 2, T, T + 1), rd=[T, T + 1], wr=[B + 2]).N(("m", u, 1)))
        cv.append(V("v_cvt_pk_bf16_f32 v%d, v%d, v%d" % (B + 3, T + 2, T + 3), rd=[T + 2, T + 3], wr=[B + 3]))
    return [ld, mm, cv, pm]

def fallback_code(slot):
    pre, c = [], []
    pre.append(V("v_subrev_u32 v%d, 6, v%d" % (TT, N6), rd=[N6], wr=[TT]))
    pre.append(V("v_and_b32 v%d, 3, v%d" % (TT + 1, TT), rd=[TT], wr=[TT + 1]))
    pre.append(V("v_and_b32 v%d, 12, v%d" % (TT, TT), rd=[TT], wr=[TT]))
    pre.append(V("v_lshlrev_b32 v%d, 2, v%d" % (TT, TT), rd=[TT], wr=[TT]))
    pre.append(V("v_lshl_or_b32 v%d, v%d, 6, v%d" % (TT, TT + 1, TT), rd=[TT, TT + 1], wr=[TT]))
    for k, d in enumerate([A0, A1, CB + 4, CB + 5]):
        pre.append(I("ds_bpermute_b32 v%d, v%d, v%d offset:%d" % (d, TT, INF + k, 4 * slot), "L", rd=[TT, INF + k], wr=[d], ld=True))
    pre[-1].G("addr_used", "info_used")
    c.append(V("v_sub_u32 v%d, v%d, v%d" % (A2, A1, A0), rd=[A0, A1], wr=[A2]))
    c.append(V("v_and_b32 v%d, 0xff, v%d" % (A2, A2), rd=[A2], wr=[A2]))
    c.append(V("v_add_u32 v%d, v%d, v%d" % (A0, A0, G16), rd=[A0, G16], wr=[A0]))
    c.append(V("v_add_u32 v%d, v%d, v%d" % (A1, A1, G16), rd=[A1, G16], wr=[A1]))
    c.append(V("v_sub_u32 v%d, v%d, v%d" % (A3, A1, A2), rd=[A1, A2], wr=[A3]))
    c.append(V("v_add_u32 v%d, v%d, v%d" % (A2, A0, A2), rd=[A0, A2], wr=[A2]))
    c.append(V("v_lshlrev_b32 v%d, 16, v%d" % (CB, CB + 4), rd=[CB + 4], wr=[CB]))
    c.append(V("v_and_b32 v%d, 0xffff0000, v%d" % (CB + 1, CB + 4), rd=[CB + 4], wr=[CB + 1]))
    c.append(V("v_lshlrev_b32 v%d, 16, v%d" % (CB + 2, CB + 5), rd=[CB + 5], wr=[CB + 2]))
    c.append(V("v_and_b32 v%d, 0xffff0000, v%d" % (CB + 3, CB + 5), rd=[CB + 5], wr=[CB + 3]))
    for u in range(3):
        for k in range(4):
            c.append(I("buffer_load_dwordx4 %s, v%d, s[%d:%d], 0 offen offset:%d" % (vr(TT + 4 * k, 4), A0 + k, SX, SX + 3, 64 * u),
                       "X", rd=[A0 + k], wr=R(TT + 4 * k, 4)))
        for k in range(4):
            c.append(S("s_waitcnt vmcnt(%d)" % (3 - k)))
            for d in range(4):
                g = TT + 4 * k + d
                lo, hi = TT + 16 + 2 * d, TT + 17 + 2 * d
                c.append(V("v_lshlrev_b32 v%d, 16, v%d" % (CB + 6, g), rd=[g], wr=[CB + 6]))
                c.append(V("v_and_b32 v%d, 0xffff0000, v%d" % (CB + 7, g), rd=[g], wr=[CB + 7]))
                if k == 0:
                    c.append(V("v_mul_f32 v%d, v%d, v%d" % (lo, CB, CB + 6), rd=[CB, CB + 6], wr=[lo]))
                    c.append(V("v_mul_f32 v%d, v%d, v%d" % (hi, CB, CB + 7), rd=[CB, CB + 7], wr=[hi]))
                else:
                    c.append(V("v_fmac_f32 v%d, v%d, v%d" % (lo, CB + k, CB + 6), rd=[CB + k, CB + 6, lo], wr=[lo]))
                    c.append(V("v_fmac_f32 v%d, v%d, v%d" % (hi, CB + k, CB + 7), rd=[CB + k, CB + 7, hi], wr=[hi]))
        for d in range(4):
            lo, hi = TT + 16 + 2 * d, TT + 17 + 2 * d
            B = bf(slot, u) + d
            c.append(V("v_cvt_pk_bf16_f32 v%d, v%d, v%d" % (B, lo, hi), rd=[lo, hi], wr=[B]))
    return pre, c

def addr_calc():
    return [
        V("v_add_u32 v%d, s%d, v%d" % (VT, S_KJ, N6), rd=[N6], wr=[VT]).N("tapadv"),
        V("v_lshlrev_b32 v%d, 3, v%d" % (BAD3, VT), rd=[VT], wr=[BAD3]).N("addr_used"),
        V("v_bitop3_b32 v%d, v%d, 32, v%d bitop3:0x6a" % (BAD3, BAD3, G16), rd=[BAD3, G16], wr=[BAD3]),
        V("v_mad_u32_u24 v%d, v%d, s%d, v%d" % (VT, VT, S_192, BAD3), rd=[VT, BAD3], wr=[VT]),
        V("v_add_u32 v%d, s%d, v%d" % (BAD, S_ROW, VT), rd=[VT], wr=[BAD]),
        V("v_add_u32 v%d, s%d, v%d" % (BAD3, S_ROW3, VT), rd=[VT], wr=[BAD3]).G("newaddr"),
    ]
def tap_adv():
    return [
        S("s_add_u32 s%d, s%d, 1" % (S_KJ, S_KJ)),
        S("s_cmp_eq_u32 s%d, 5" % S_KJ),
        S("s_cselect_b32 s%d, 0x1000, 0" % S_T),
        S("s_cselect_b32 s%d, 0, s%d" % (S_KJ, S_KJ)),
        S("s_add_u32 s%d, s%d, s%d" % (S_ROW, S_ROW, S_T)),
        S("s_add_u32 s%d, s%d, s%d" % (S_ROW3, S_ROW3, S_T)).G("tapadv"),
        S("s_add_u32 s%d, s%d, 1" % (S_RING, S_RING)),
        S("s_cmp_eq_u32 s%d, 3" % S_RING),
        S("s_cselect_b32 s%d, 0x%x, 0x%x" % (S_WD, 0, 0)),
        S("s_cselect_b32 s%d, 0, s%d" % (S_RING, S_RING)).G("wd"),
    ]
S_WDM, S_WDP = 44, 45
def salu_seg0():
    s = tap_adv()
    s[8].t = "s_cselect_b32 s%d, s%d, s%d" % (S_WD, S_WDM, S_WDP)
    return s
def wbase_upd():
    s = [V("v_add_u32 v%d, s%d, v%d" % (w, S_WD, w), rd=[w], wr=[w]) for w in WBs]
    s[0].N("wd", "wtail")
    return s
def info_read():
    return [V("v_add_u32 v%d, s%d, v%d" % (VFL, S_PAR, VINFA), rd=[VINFA], wr=[VFL]).N("info_used"),
            rd128(INF, VFL, 0)]
def bar_stream(general):
    s = [S("s_barrier", after=BARPOS - 1, rd=(R(INF, 4) if general else [])).G("bar")]
    return s
def flag_read():
    return [rd32(VFL, VFLA, 0).N("bar"),
            V("v_xor_b32 v%d, 16, v%d" % (VFLA, VFLA), rd=[VFLA], wr=[VFLA]),
            V("v_readfirstlane_b32 s%d, v%d" % (S_FN, VFL), rd=[VFL]).G("fn")]
def flag_upd(after):
    return [S("s_and_b32 s%d, s%d, 0x30" % (S_C, S_F1), after=after).N("fn"),
            S("s_xor_b32 s%d, s%d, 0x1000" % (S_PAR, S_PAR)),
            S("s_mov_b32 s%d, s%d" % (S_F1, S_FN)),
            S("s_or_b32 s%d, s%d, s%d" % (S_COMB, S_C, S_FN)),
            S("s_cmp_eq_u32 s%d, 0" % S_COMB).G("end")]

ALLLD = set(R(AF, 72) + R(BF, 48) + R(INF, 4) + [VFL])

def build_fast():
    m = main_mfmas()
    st = []
    p2 = prep_fast(2)[0]
    st.append(p2)
    st.append(w_stream(0, 60))
    st.append(salu_seg0() + bar_stream(False) + flag_upd(50))
    st.append(addr_calc() + wbase_upd())
    st.append(prep_fast(0)[0] + prep_fast(3)[0] + prep_fast(1)[0])
    st.append(flag_read())
    return schedule(m, st, 0, pend_hint=ALLLD)

def build_seg(k, mode, pro=False):
    lo, hi, slot = SEGS[k]
    m = [] if pro else main_mfmas()[lo:hi]
    st = []
    post = []
    if mode == 0: pr = prep_fast(slot)
    elif mode == 1: pr = prep_interp(slot, False)
    elif mode == 2: pr = prep_interp(slot, True)
    else:
        pre, post = fallback_code(slot); pr = [pre]
    pre_given = []
    if k != 0:
        for s in pr:
            for x in s: x.need.discard("newaddr")
    ws = w_stream(lo, hi)
    if pro:
        for s in pr + [ws]:
            for x in s: x.after = None
    st.append(pr[0])
    st.append(ws)
    st += pr[1:]
    if not pro:
        if k == 0:
            st.append(salu_seg0())
            st.append(info_read())
            st.append(addr_calc() + wbase_upd())
        if k == 2:
            st.append(bar_stream(True))
            fr = flag_read()
            st.append(fr)
        if k == 3:
            fu = flag_upd(None)
            fu[0].need.discard("fn")
            st.append(fu)
    cap = 2 if mode == 0 else 3
    b = schedule(m, st, lo, pend_hint=ALLLD, vec_cap=cap)
    return b + post

blocks = {}
blocks["FAST"] = build_fast()
for k in range(4):
    for mode in range(4):
        blocks["G%d_%d" % (k, mode)] = build_seg(k, mode)
for k in range(1, 4):
    for mode in range(4):
        blocks["P%d_%d" % (k, mode)] = build_seg(k, mode, pro=True)
preds = {}
G = lambda k: ["G%d_%d" % (k, m) for m in range(4)]
P = lambda k: ["P%d_%d" % (k, m) for m in range(4)]
for n in P(1): preds[n] = []
for k in (2, 3):
    for n in P(k): preds[n] = P(k - 1)
for n in ["FAST"] + G(0): preds[n] = P(3) + ["FAST"] + G(3)
for k in (1, 2, 3):
    for n in G(k): preds[n] = G(k - 1)
exits = {n: {} for n in blocks}
final = {}
for it in range(6):
    changed = False
    for n in blocks:
        ent = merge_states([exits[p] for p in preds[n]])
        b, ex = lgkm_pass(blocks[n], ent)
        final[n] = b
        mx = merge_states([exits[n], ex])
        if mx != exits[n]:
            exits[n] = mx; changed = True
    if not changed: break
assert not changed
hz = {}
for n in blocks:
    hz[n] = hazard_pass(final[n], prev=[final[p][-9:] for p in preds[n]])
EXIT_STATE = merge_states([exits["FAST"]] + [exits[n] for n in G(3)])

def stats(n):
    b = hz[n]
    from collections import Counter
    return n, len(b), dict(Counter(i.k for i in b))

E("; @launch grid=(256,1,1) block=(512,1,1) lds=%d" % LDS_TOTAL)
E('.amdgcn_target "amdgcn-amd-amdhsa--gfx950"')
E(".text")
E(".globl %s_kernel" % NAME)
E(".p2align 8")
E(".type %s_kernel,@function" % NAME)
E("%s_kernel:" % NAME)
def A(s):
    for line in s.strip("\n").split("\n"):
        E("    " + line.strip() if not line.strip().endswith(":") else line.strip())

def stamp(idx):
    if DIAG:
        A("s_memtime s[%d:%d]" % (80 + 2 * idx, 81 + 2 * idx))

stamp(0)
if DIAG: A("s_memrealtime s[90:91]")
A(f"""
s_load_dwordx8 s[64:71], s[0:1], 0
s_cmp_ge_u32 s2, 256
s_cbranch_scc1 L_end
s_and_b32 s3, s2, 7
s_lshl_b32 s3, s3, 5
s_lshr_b32 s29, s2, 3
s_add_u32 s3, s3, s29
s_cmp_ge_u32 s3, 252
s_cbranch_scc1 L_end
v_lshrrev_b32 v1, 6, v0
v_and_b32 v0, 63, v0
s_mul_i32 s29, s3, 3641
v_readfirstlane_b32 s{S_WID}, v1
s_lshr_b32 s29, s29, 16
s_lshl_b32 s{S_C0}, s29, 4
s_mul_i32 s29, s29, 18
s_sub_u32 s29, s3, s29
s_mul_i32 s{S_R0}, s29, 13
s_sub_u32 s{S_H}, 224, s{S_R0}
s_min_u32 s{S_H}, s{S_H}, 13
s_min_u32 s{S_MT}, s{S_R0}, 1
s_min_u32 s{S_ML}, s{S_C0}, 1
s_sub_i32 s{S_A0}, s{S_R0}, s{S_MT}
s_sub_i32 s{S_A0}, s{S_A0}, 2
s_sub_i32 s{S_B0}, s{S_C0}, s{S_ML}
s_sub_i32 s{S_B0}, s{S_B0}, 2
s_and_b32 s{S_W}, s{S_WID}, 3
s_mov_b32 s{SX+2}, 9633792
s_mov_b32 s{SX+3}, 0x00020000
s_mov_b32 s{SO+2}, 5017600
s_mov_b32 s{SO+3}, 0x00020000
s_mov_b32 s{SW+2}, 460800
s_mov_b32 s{SW+3}, 0x00020000
s_mov_b32 s{SD+2}, 9633792
s_mov_b32 s{SD+3}, 0x00020000
""")
for m in range(3):
    A(f"""
s_add_u32 s29, s{S_WID}, {8*m}
s_lshl_b32 s29, s29, 6
v_add_u32 v2, s29, v0
v_mul_u32_u24 v3, 5243, v2
v_lshrrev_b32 v3, 19, v3
v_mul_u32_u24 v4, 100, v3
v_sub_u32 v4, v2, v4
v_add_u32 v3, s{S_R0}, v3
v_min_u32 v3, 223, v3
v_mul_u32_u24 v3, 22400, v3
v_lshl_add_u32 v{10+m}, v4, 4, v3
""")
A(f"""
s_lshl_b32 s29, s{S_W}, 6
v_add_u32 v2, s29, v0
v_mul_u32_u24 v3, 171, v2
v_lshrrev_b32 v3, 11, v3
v_mul_u32_u24 v4, 12, v3
v_sub_u32 v4, v2, v4
v_add_u32 v3, s{S_B0}, v3
v_lshrrev_b32 v5, 1, v3
v_and_b32 v5, 2, v5
v_xor_b32 v4, v4, v5
v_max_i32 v3, 0, v3
v_min_i32 v3, 223, v3
v_mul_u32_u24 v3, 192, v3
v_lshl_add_u32 v13, v4, 4, v3
s_waitcnt lgkmcnt(0)
s_mov_b32 s{SX}, s64
s_and_b32 s{SX+1}, s65, 0xffff
s_mov_b32 s{SO}, s66
s_and_b32 s{SO+1}, s67, 0xffff
s_mov_b32 s{SW}, s68
s_and_b32 s{SW+1}, s69, 0xffff
s_mov_b32 s{SD}, s70
s_and_b32 s{SD+1}, s71, 0xffff
s_mul_i32 s46, s{S_C0}, 100
s_lshl_b32 s47, s{S_WID}, 10
s_add_u32 s47, s47, {OFFB}
s_mov_b32 m0, s47
s_add_u32 s47, s47, 8192
buffer_load_dwordx4 v10, s[{SO}:{SO+3}], s46 offen lds
s_mov_b32 m0, s47
s_add_u32 s47, s47, 8192
buffer_load_dwordx4 v11, s[{SO}:{SO+3}], s46 offen lds
s_cmp_ge_u32 s{S_WID}, 5
s_cbranch_scc1 L_no3rd
s_mov_b32 m0, s47
s_nop 0
buffer_load_dwordx4 v12, s[{SO}:{SO+3}], s46 offen lds
L_no3rd:
s_lshr_b32 s46, s{S_WID}, 2
s_lshl_b32 s47, s46, 12
s_lshl_b32 s48, s{S_W}, 10
s_add_u32 s47, s47, s48
s_add_i32 s46, s46, s{S_A0}
""")
for m in range(9):
    A(f"""
s_max_i32 s48, s46, 0
s_min_i32 s48, s48, 223
s_mul_i32 s48, s48, 43008
s_mov_b32 m0, s47
s_add_u32 s47, s47, 8192
buffer_load_dwordx4 v13, s[{SX}:{SX+3}], s48 offen lds
s_add_i32 s46, s46, 2
""")
A(f"""
s_cmp_ge_u32 s{S_WID}, 4
s_cbranch_scc1 L_helper
""")

A(f"""
s_setprio 3
v_lshrrev_b32 v20, 4, v0
v_and_b32 v21, 15, v0
v_bfe_u32 v22, v0, 2, 2
v_and_b32 v23, 3, v0
v_add_u32 v{N6}, 6, v21
v_lshlrev_b32 v{G16}, 4, v20
v_lshlrev_b32 v{CC16}, 4, v23
v_lshlrev_b32 v24, 4, v0
s_lshl_b32 s29, s{S_W}, 10
s_add_u32 s29, s29, {INFB}
v_add_u32 v{VINFA}, s29, v24
s_lshl_b32 s29, s{S_W}, 2
s_add_u32 s29, s29, {FLB}
v_mov_b32 v{VFLA}, s29
v_mul_u32_u24 v24, 1568, v20
v_mul_u32_u24 v25, 192, v22
v_lshlrev_b32 v26, 3, v23
v_add3_u32 v24, v24, v25, v26
v_add_u32 v24, {WB}, v24
s_cmp_eq_u32 s{S_W}, 3
s_cselect_b32 s46, 0, s{S_W}
s_lshl_b32 s47, s46, 6
v_add_u32 v{WBs[0]}, s47, v24
s_add_u32 s47, s47, 64
s_cmp_eq_u32 s47, 192
s_cselect_b32 s47, 0, s47
v_add_u32 v{WBs[1]}, s47, v24
s_add_u32 s47, s47, 64
s_cmp_eq_u32 s47, 192
s_cselect_b32 s47, 0, s47
v_add_u32 v{WBs[2]}, s47, v24
""")
A(f"""
v_and_b32 v25, 1, v22
v_lshrrev_b32 v26, 1, v22
v_mov_b32 v27, 0x0c0c0100
v_mov_b32 v28, 0x01000c0c
v_cmp_eq_u32 vcc, 1, v25
v_mov_b32 v29, 0x0c0c0302
v_mov_b32 v30, 0x03020c0c
v_cndmask_b32 v27, v27, v28, vcc
v_cndmask_b32 v29, v29, v30, vcc
v_cmp_eq_u32 s[46:47], v23, v20
v_cmp_eq_u32 s[48:49], 0, v26
v_mov_b32 v28, 0x0c0c0c0c
s_and_b64 s[50:51], s[46:47], s[48:49]
s_andn2_b64 s[52:53], s[46:47], s[48:49]
v_cndmask_b32 v{SEL[0]}, v28, v27, s[50:51]
v_cndmask_b32 v{SEL[1]}, v28, v27, s[52:53]
v_cndmask_b32 v{SEL[2]}, v28, v29, s[50:51]
v_cndmask_b32 v{SEL[3]}, v28, v29, s[52:53]
s_mov_b32 s{S_192}, 192
s_mov_b32 s{S_FFF}, 0xfff
s_mov_b32 s{S_WDM}, {(-2*WSLOT) & 0xffffffff}
s_mov_b32 s{S_WDP}, {WSLOT}
s_mov_b32 s{S_KJ}, 0
s_mov_b32 s{S_RING}, 0
s_sub_i32 s46, s{S_ML}, 6
s_mul_i32 s46, s46, 192
s_lshl_b32 s47, s{S_MT}, 12
s_add_i32 s46, s46, s47
s_add_i32 s{S_ROW3}, s46, {12*4096}
s_lshl_b32 s47, s{S_W}, 12
s_add_i32 s{S_ROW}, s46, s47
""")
for r in range(ACC, 256):
    A("v_mov_b32 v%d, 0" % r)
for x in addr_calc(): A(x.t)
A(f"""
s_cmp_ge_u32 s{S_WID}, 5
s_waitcnt vmcnt(9)
s_barrier
s_barrier
ds_read_b32 v{VFL}, v{VFLA}
ds_read_b32 v{VT}, v{VFLA} offset:16
ds_read_b128 {vr(INF,4)}, v{VINFA}
s_mov_b32 s{S_PAR}, 0x1000
s_waitcnt lgkmcnt(0)
v_readfirstlane_b32 s{S_T2}, v{VFL}
v_readfirstlane_b32 s{S_F1}, v{VT}
s_waitcnt vmcnt(0)
""")
stamp(1)
A("s_barrier")
stamp(2)
if DIAG: A("s_waitcnt lgkmcnt(0)")
def dispatch(prefix, k, sreg, slot, nxt):
    A(f"s_bfe_u32 s{S_T}, s{sreg}, 0x2000{2*slot}")
    A(f"s_cmp_lg_u32 s{S_T}, 0")
    A(f"s_cbranch_scc1 L_{prefix}{k}_d")
    EB(hz["%s%d_0" % (prefix, k)])
    E(f"L_{prefix}{k}_end:")
def slow_variants(prefix, k):
    E(f"L_{prefix}{k}_d:")
    A(f"s_cmp_eq_u32 s{S_T}, 2")
    A(f"s_cbranch_scc1 L_{prefix}{k}_2")
    A(f"s_cmp_eq_u32 s{S_T}, 3")
    A(f"s_cbranch_scc1 L_{prefix}{k}_3")
    for mode in (1, 2, 3):
        E(f"L_{prefix}{k}_{mode}:")
        EB(hz["%s%d_%d" % (prefix, k, mode)])
        A(f"s_branch L_{prefix}{k}_end")
for k in (1, 2, 3):
    dispatch("P", k, S_T2, SEGS[k][2], None)
A(f"""
s_and_b32 s{S_C}, s{S_T2}, 0x30
s_or_b32 s{S_COMB}, s{S_C}, s{S_F1}
s_cmp_lg_u32 s{S_COMB}, 0
s_cbranch_scc1 L_general
""")
E(".p2align 6")
E("L_fast:")
EB(hz["FAST"])
A("s_cbranch_scc1 L_fast")
E("L_general:")
A(f"""
s_bitcmp1_b32 s{S_COMB}, 8
s_cbranch_scc1 L_epi
""")
dispatch("G", 0, S_C, 2, None)
dispatch("G", 1, S_F1, 0, None)
dispatch("G", 2, S_F1, 3, None)
dispatch("G", 3, S_F1, 1, None)
A(f"""
s_cmp_eq_u32 s{S_COMB}, 0
s_cbranch_scc1 L_fast
s_branch L_general
""")
for k in range(4): slow_variants("G", k)
for k in (1, 2, 3): slow_variants("P", k)

E("L_epi:")
stamp(3)
A(f"""
s_waitcnt lgkmcnt(0)
v_subrev_u32 v20, 6, v{N6}
v_mul_u32_u24 v20, 192, v20
v_lshrrev_b32 v21, 1, v{G16}
v_and_b32 v21, 16, v21
v_lshlrev_b32 v22, 1, v{G16}
v_and_b32 v22, 32, v22
v_add3_u32 v20, v20, v21, v22
s_cmp_eq_u32 s{S_W}, 3
s_cselect_b32 s46, 0, s{S_W}
s_lshl_b32 s46, s46, 6
v_add_u32 v21, s46, v20
s_add_u32 s46, s46, 64
s_cmp_eq_u32 s46, 192
s_cselect_b32 s46, 0, s46
v_add_u32 v22, s46, v20
s_add_u32 s46, s46, 64
s_cmp_eq_u32 s46, 192
s_cselect_b32 s46, 0, s46
v_add_u32 v23, s46, v20
s_mul_i32 s47, s{S_C0}, 192
s_nop 4
""")
tcur = [0]
for slot in range(4):
    if slot < 3:
        A(f"s_add_u32 s46, s{S_W}, {4*slot}")
    else:
        A(f"s_cmp_eq_u32 s{S_W}, 3")
        A(f"s_cselect_b32 s46, 13, 12")
    A(f"""
s_cmp_ge_u32 s46, s{S_H}
s_cbranch_scc1 L_skip{slot}
s_add_u32 s46, s46, s{S_R0}
s_mul_i32 s46, s46, 43008
s_add_u32 s46, s46, s47
""")
    for p in range(3 if slot < 3 else 1):
        t = 32 + 4 * ((slot * 3 + p) % 10)
        e, o = acc(slot, 2 * p), acc(slot, 2 * p + 1)
        A(f"""
v_cvt_pk_bf16_f32 v{t}, v{e}, v{e+1}
v_cvt_pk_bf16_f32 v{t+1}, v{e+2}, v{e+3}
v_cvt_pk_bf16_f32 v{t+2}, v{o}, v{o+1}
v_cvt_pk_bf16_f32 v{t+3}, v{o+2}, v{o+3}
s_nop 1
v_permlane16_swap_b32 v{t}, v{t+2}
v_permlane16_swap_b32 v{t+1}, v{t+3}
buffer_store_dwordx4 v[{t}:{t+3}], v{21+p}, s[{SD}:{SD+3}], s46 offen
""")
    E(f"L_skip{slot}:")
if DIAG:
    A("s_waitcnt vmcnt(0)")
    stamp(4)
    A("s_memrealtime s[92:93]")
    A(f"""
s_load_dwordx2 s[72:73], s[0:1], 32
s_cmp_lg_u32 s{S_W}, 0
s_cbranch_scc1 L_end
s_mov_b32 s46, 0
s_cmp_eq_u32 s3, 0
s_cbranch_scc1 L_dg
s_mov_b32 s46, 32
s_cmp_eq_u32 s3, 100
s_cbranch_scc0 L_end
L_dg:
v_mov_b32 v20, s46
s_waitcnt lgkmcnt(0)
s_sub_u32 s88, s88, s80
s_sub_u32 s86, s86, s84
s_sub_u32 s82, s82, s80
s_sub_u32 s94, s92, s90
s_mov_b64 exec, 1
""")
    for i, r in enumerate([90, 92, 94, 88, 82, 86]):
        A(f"v_mov_b32 v21, s{r}")
        A(f"global_store_dword v20, v21, s[72:73] offset:{4*i}")
A("s_endpgm")

H_TAU, H_KJ, H_WS, H_WL, H_FLG, H_PAR, H_C223 = 30, 31, 32, 33, 34, 35, 36
H_VAL, H_SLOW, H_BOTH, H_OOB, H_TMP, H_M0, H_GM = 38, 40, 42, 44, 46, 48, 50
H_S1, H_S2, H_RING = 52, 53, 54
BY, BX, OFA, IFA, FLA, WV, D = 1, 2, 3, 4, 5, 6, 7
E("L_helper:")
A(f"""
v_lshlrev_b32 v{WV}, 4, v0
s_mul_i32 s{H_WS}, s{S_W}, {3*1536}
s_mul_i32 s{H_WL}, s{S_W}, {3*1568}
s_add_u32 s{H_WL}, s{H_WL}, {WB}
s_mov_b32 s{H_RING}, 0
""")
def w_issue():
    A("s_mov_b32 exec_hi, 0xffff")
    for m in range(3):
        A(f"""
s_add_u32 s{H_S1}, s{H_WL}, {m*1568}
s_mov_b32 m0, s{H_S1}
s_add_u32 s{H_S2}, s{H_WS}, {m*1536}
buffer_load_dwordx4 v{WV}, s[{SW}:{SW+3}], s{H_S2} offen lds
buffer_load_dwordx4 v{WV}, s[{SW}:{SW+3}], s{H_S2} offen offset:768 lds
""")
    A(f"""
s_mov_b32 exec_hi, -1
s_add_u32 s{H_WS}, s{H_WS}, 18432
s_cmp_ge_u32 s{H_WS}, 460800
s_cselect_b32 s{H_S1}, 460800, 0
s_sub_u32 s{H_WS}, s{H_WS}, s{H_S1}
s_add_u32 s{H_RING}, s{H_RING}, 1
s_cmp_eq_u32 s{H_RING}, 3
s_cselect_b32 s{H_S1}, {3*WSLOT}, 0
s_cselect_b32 s{H_RING}, 0, s{H_RING}
s_add_u32 s{H_WL}, s{H_WL}, {WSLOT}
s_sub_u32 s{H_WL}, s{H_WL}, s{H_S1}
""")
w_issue()
w_issue()
A(f"""
v_lshrrev_b32 v20, 4, v0
v_bfe_u32 v22, v0, 2, 2
v_and_b32 v23, 3, v0
v_lshl_add_u32 v20, v22, 2, v20
v_lshlrev_b32 v21, 2, v23
v_add_u32 v21, s{S_W}, v21
v_min_u32 v21, 12, v21
v_cmp_gt_u32 s[{H_VAL}:{H_VAL+1}], s{S_H}, v21
v_lshl_add_u32 v{OFA}, v21, 4, v20
v_mul_u32_u24 v{OFA}, 100, v{OFA}
v_add_u32 v{OFA}, {OFFB}, v{OFA}
v_add_u32 v21, s{S_R0}, v21
v_add_u32 v20, s{S_C0}, v20
v_cvt_f32_u32 v{BY}, v21
v_cvt_f32_u32 v{BX}, v20
v_add_f32 v{BY}, -2.0, v{BY}
v_add_f32 v{BX}, -2.0, v{BX}
s_lshl_b32 s29, s{S_W}, 10
s_add_u32 s29, s29, {INFB}
v_add_u32 v{IFA}, s29, v{WV}
s_lshl_b32 s29, s{S_W}, 2
s_add_u32 s29, s29, {FLB}
v_mov_b32 v{FLA}, s29
s_mov_b32 s{H_TAU}, 0
s_mov_b32 s{H_KJ}, 0
s_mov_b32 s{H_PAR}, 0
s_mov_b32 s{H_C223}, 0x435f435f
s_mov_b32 s{H_M0}, 0x11111111
s_mov_b32 s{H_M0+1}, 0x11111111
s_waitcnt vmcnt(21)
s_barrier
ds_read_b32 v{D}, v{OFA}
L_hloop:
s_cmp_lt_u32 s{H_TAU}, 2
s_cbranch_scc1 L_hnow
""")
w_issue()
A(f"""
L_hnow:
s_mov_b32 s{H_FLG}, 0
s_cmp_eq_u32 s{H_TAU}, 26
s_cselect_b32 s{H_FLG}, 0x100, 0
s_cmp_ge_u32 s{H_TAU}, 25
s_cbranch_scc1 L_hflags
s_waitcnt lgkmcnt(0)
v_lshlrev_b32 v10, 16, v{D}
v_and_b32 v11, 0xffff0000, v{D}
v_add_u32 v{OFA}, 4, v{OFA}
v_add_f32 v10, v{BY}, v10
v_add_f32 v11, v{BX}, v11
ds_read_b32 v{D}, v{OFA}
v_cvt_pk_bf16_f32 v12, v{BY}, v{BX}
v_cvt_pk_bf16_f32 v10, v10, v11
v_pk_max_i16 v12, v12, 0
v_pk_max_i16 v10, v10, 0
v_pk_min_i16 v12, v12, s{H_C223}
v_pk_min_i16 v10, v10, s{H_C223}
s_add_u32 s{H_KJ}, s{H_KJ}, 1
s_cmp_eq_u32 s{H_KJ}, 5
s_cselect_b32 s{H_S1}, 0xc0800000, 1.0
s_cselect_b32 s{H_S2}, 1.0, 0
s_cselect_b32 s{H_KJ}, 0, s{H_KJ}
v_cmp_ne_u32 vcc, v10, v12
v_add_f32 v{BX}, s{H_S1}, v{BX}
v_add_f32 v{BY}, s{H_S2}, v{BY}
s_and_b64 s[{H_SLOW}:{H_SLOW+1}], vcc, s[{H_VAL}:{H_VAL+1}]
s_cbranch_scc0 L_hflags
v_lshlrev_b32 v11, 16, v10
v_and_b32 v12, 0xffff0000, v10
v_floor_f32 v13, v11
v_floor_f32 v14, v12
v_ceil_f32 v15, v11
v_ceil_f32 v16, v12
v_sub_f32 v11, v11, v13
v_sub_f32 v12, v12, v14
v_cvt_i32_f32 v13, v13
v_cvt_i32_f32 v14, v14
v_cvt_i32_f32 v15, v15
v_cvt_i32_f32 v16, v16
v_sub_f32 v17, 1.0, v11
v_sub_f32 v18, 1.0, v12
v_cmp_ne_u32 vcc, v13, v15
v_cmp_ne_u32 s[{H_TMP}:{H_TMP+1}], v14, v16
v_cvt_pk_bf16_f32 v17, v17, v18
s_and_b64 vcc, vcc, s[{H_TMP}:{H_TMP+1}]
v_and_b32 v18, 0xffff0000, v17
v_lshlrev_b32 v17, 16, v17
s_and_b64 s[{H_BOTH}:{H_BOTH+1}], vcc, s[{H_VAL}:{H_VAL+1}]
v_mul_f32 v20, v17, v18
v_mul_f32 v21, v11, v12
v_mul_f32 v22, v17, v12
v_mul_f32 v23, v11, v18
v_add_f32 v24, v11, v12
v_cndmask_b32 v21, v24, v21, vcc
v_cndmask_b32 v22, 0, v22, vcc
v_cndmask_b32 v23, 0, v23, vcc
v_cvt_pk_bf16_f32 v30, v20, v21
v_cvt_pk_bf16_f32 v31, v22, v23
v_subrev_u32 v20, s{S_A0}, v13
v_subrev_u32 v21, s{S_B0}, v14
v_subrev_u32 v22, s{S_A0}, v15
v_subrev_u32 v23, s{S_B0}, v16
v_min_i32 v24, v20, v21
v_add_u32 v25, 3, v22
v_max_i32 v25, v25, v23
v_cmp_gt_i32 vcc, 0, v24
v_cmp_lt_i32 s[{H_TMP}:{H_TMP+1}], 20, v25
v_mul_u32_u24 v21, 192, v21
v_mul_u32_u24 v23, 192, v23
s_or_b64 vcc, vcc, s[{H_TMP}:{H_TMP+1}]
v_lshl_add_u32 v28, v20, 12, v21
v_lshl_add_u32 v29, v22, 12, v23
v_lshlrev_b32 v20, 3, v14
v_lshlrev_b32 v22, 3, v16
v_and_or_b32 v28, v20, 32, v28
v_and_or_b32 v29, v22, 32, v29
s_mov_b64 s[{H_GM}:{H_GM+1}], 0
s_and_b64 s[{H_OOB}:{H_OOB+1}], vcc, s[{H_VAL}:{H_VAL+1}]
""")
for c in range(4):
    A(f"""
s_lshl_b64 s[56:57], s[{H_M0}:{H_M0+1}], {c}
s_and_b64 s[{H_TMP}:{H_TMP+1}], s[56:57], s[{H_SLOW}:{H_SLOW+1}]
s_cselect_b32 s{H_S1}, {1 << (2*c)}, 0
s_and_b64 s[{H_TMP}:{H_TMP+1}], s[56:57], s[{H_BOTH}:{H_BOTH+1}]
s_cselect_b32 s{H_S1}, {2 << (2*c)}, s{H_S1}
s_and_b64 s[{H_TMP}:{H_TMP+1}], s[56:57], s[{H_OOB}:{H_OOB+1}]
s_cselect_b32 s{H_S1}, {3 << (2*c)}, s{H_S1}
s_cselect_b64 s[56:57], s[56:57], 0
s_or_b32 s{H_FLG}, s{H_FLG}, s{H_S1}
s_or_b64 s[{H_GM}:{H_GM+1}], s[{H_GM}:{H_GM+1}], s[56:57]
""")
A(f"""
s_cbranch_scc0 L_hnog
v_mul_u32_u24 v14, 192, v14
v_mul_u32_u24 v16, 192, v16
v_mul_u32_u24 v13, 43008, v13
v_mul_u32_u24 v15, 43008, v15
v_add_u32 v13, v13, v14
v_add_u32 v15, v15, v16
v_cndmask_b32 v28, v28, v13, s[{H_GM}:{H_GM+1}]
v_cndmask_b32 v29, v29, v15, s[{H_GM}:{H_GM+1}]
L_hnog:
v_add_u32 v20, s{H_PAR}, v{IFA}
ds_write_b128 v20, v[28:31]
L_hflags:
v_mov_b32 v21, s{H_FLG}
ds_write_b32 v{FLA}, v21
v_xor_b32 v{FLA}, 16, v{FLA}
s_xor_b32 s{H_PAR}, s{H_PAR}, 0x1000
s_add_u32 s{H_TAU}, s{H_TAU}, 1
s_cmp_eq_u32 s{H_TAU}, 1
s_cbranch_scc1 L_hloop
s_cmp_gt_u32 s{H_TAU}, 2
s_cbranch_scc1 L_hsteady
s_waitcnt lgkmcnt(0)
s_barrier
s_waitcnt vmcnt(6)
s_barrier
s_branch L_hloop
L_hsteady:
s_waitcnt vmcnt(6) lgkmcnt(0)
s_barrier
s_cmp_le_u32 s{H_TAU}, 26
s_cbranch_scc1 L_hloop
s_waitcnt vmcnt(0)
L_end:
s_endpgm
""")
E('.section .rodata,"a"')
E(".p2align 6")
E(".amdhsa_kernel %s_kernel" % NAME)
E("  .amdhsa_next_free_vgpr 256")
E("  .amdhsa_next_free_sgpr 102")
E("  .amdhsa_accum_offset 256")
E("  .amdhsa_group_segment_fixed_size 0")
E("  .amdhsa_kernarg_size 48")
E("  .amdhsa_user_sgpr_count 2")
E("  .amdhsa_user_sgpr_kernarg_segment_ptr 1")
E("  .amdhsa_system_sgpr_workgroup_id_x 1")
E("  .amdhsa_float_denorm_mode_32 3")
E(".end_amdhsa_kernel")
open(OUT, "w").write("\n".join(L) + "\n")
for n in hz: print(*stats(n))
```

```python
import re

def regs(tok):
    tok = tok.strip()
    tok = re.sub(r"^(neg|abs)\((.*)\)$", r"\2", tok).lstrip("-").strip("|")
    m = re.match(r"^([vs])(\d+)$", tok)
    if m: return [(m.group(1), int(m.group(2)))]
    m = re.match(r"^([vs])\[(\d+):(\d+)\]$", tok)
    if m: return [(m.group(1), i) for i in range(int(m.group(2)), int(m.group(3)) + 1)]
    if tok in ("vcc", "vcc_lo", "vcc_hi"): return [("vcc", 0)]
    if tok == "m0": return [("m0", 0)]
    if tok in ("exec", "exec_lo", "exec_hi"): return [("exec", 0)]
    return []

class Ins:
    def __init__(self, text):
        self.text = text
        t = text.split(";")[0].strip()
        self.op = t.split()[0]
        rest = t[len(self.op):].strip()
        ops = [o.strip() for o in re.split(r",\s*(?![^\[]*\])", rest)] if rest else []
        if ops:
            ops[-1] = ops[-1].split()[0] if ops[-1] else ops[-1]
        self.ops = ops
        op = self.op
        self.kind = ("M" if op.startswith("v_mfma") else "V" if op.startswith("v_") else
                     "L" if op.startswith("ds_") else "X" if op.startswith(("buffer_", "global_")) else "S")
        self.dpp = "_dpp" in op or "quad_perm" in t or "row_" in t
        self.lds = self.kind == "X" and re.search(r"\blds\b", t) is not None
        rd, wr = [], []
        R = [regs(o) for o in ops]
        self.srcc = []
        if self.kind == "M":
            wr = R[0]; rd = R[1] + R[2] + R[3]; self.srcc = R[3]
        elif self.kind == "V":
            if op.startswith("v_cmp"):
                wr = R[0]; rd = sum(R[1:], [])
            elif op.startswith(("v_addc_co", "v_subb_co", "v_add_co", "v_sub_co", "v_subrev_co")):
                wr = R[0] + R[1]; rd = sum(R[2:], [])
            elif op.startswith("v_permlane") and "swap" in op:
                wr = R[0] + R[1]; rd = R[0] + R[1]
            else:
                wr = R[0]; rd = sum(R[1:], [])
                if op.startswith(("v_fmac", "v_mac", "v_writelane")) or self.dpp: rd = rd + R[0]
                if op.startswith("v_cndmask") and len(ops) == 3: rd = rd + [("vcc", 0)]
        elif self.kind == "L":
            if op.startswith(("ds_read", "ds_bpermute", "ds_permute")):
                wr = R[0]; rd = sum(R[1:], [])
            else:
                rd = sum(R, [])
        elif self.kind == "X":
            if "store" in op or "atomic" in op or self.lds:
                rd = sum(R, [])
            else:
                wr = R[0]; rd = sum(R[1:], [])
            self.sdata = (R[0] if op.startswith("buffer_store") else R[1]) if "store" in op else []
        else:
            if op.startswith(("s_cmp", "s_bitcmp", "s_cbranch", "s_branch", "s_waitcnt", "s_barrier", "s_nop", "s_setprio", "s_endpgm")):
                rd = sum(R, [])
            elif op.startswith("s_set_gpr_idx_on"):
                rd = sum(R, []); wr = [("m0", 0)]
            else:
                wr = R[0] if R else []; rd = sum(R[1:], [])
        self.rd = set(rd); self.wr = set(wr); self.srcc = set(self.srcc)
        m = re.match(r"s_nop\s+(\d+)", t)
        self.states = int(m.group(1)) + 1 if m else 1

def need(p, c):
    r = 0
    vw = {x for x in p.wr if x[0] == "v"}
    sw = {x for x in p.wr if x[0] in ("s", "vcc")}
    if p.kind == "V":
        if c.kind == "M" and vw & c.rd: r = max(r, 2)
        if c.kind == "V":
            if c.dpp and vw & c.rd: r = max(r, 2)
            if c.op.startswith("v_permlane") and vw & c.rd: r = max(r, 2)
            if c.op.startswith(("v_readfirstlane", "v_readlane")) and vw & c.rd: r = max(r, 1)
            if sw & c.rd: r = max(r, 2)
        if c.kind == "X" and sw & c.rd: r = max(r, 5)
    if p.kind == "S" and ("m0", 0) in p.wr and c.kind == "X" and c.lds: r = max(r, 1)
    if p.kind == "X" and re.search(r"store_dwordx[34]", p.op) and c.kind in ("V", "M", "L", "X") and set(p.sdata) & c.wr:
        r = max(r, 2)
    if p.kind == "M":
        if c.kind in ("V", "L", "X") and (vw & (c.rd | c.wr)): r = max(r, 8)
        if c.kind == "M":
            ab = c.rd - c.srcc
            if vw & ab: r = max(r, 8)
            elif (vw & c.srcc) and vw != c.srcc: r = max(r, 6)
            elif (vw & c.wr) and vw != c.srcc: r = max(r, 8)
        if c.kind == "V" and (p.srcc & c.wr): r = max(r, 3)
    return r

def fix(lines, verbose=True):
    total = 0
    while True:
        items = []
        labels = {}
        for li, l in enumerate(lines):
            s = l.split(";")[0].strip()
            if not s or s.startswith("."): continue
            if s.endswith(":"):
                labels[s[:-1]] = len(items); continue
            items.append((li, Ins(s)))
        n = len(items)
        preds = [[] for _ in range(n + 1)]
        for i, (li, x) in enumerate(items):
            if x.op not in ("s_branch", "s_endpgm"): preds[i + 1].append(i)
            if x.op.startswith(("s_branch", "s_cbranch")):
                preds[labels[x.ops[0]]].append(i)
        ins_at = None
        for i, (li, c) in enumerate(items):
            if c.kind == "S": continue
            worst = 0
            stack = [(p, 0) for p in preds[i]]
            seen = set()
            while stack:
                p, d = stack.pop()
                if d >= 8 or (p, d) in seen: continue
                seen.add((p, d))
                x = items[p][1]
                worst = max(worst, need(x, c) - d)
                for q in preds[p]: stack.append((q, d + x.states))
            if worst > 0:
                ins_at = (li, worst, c.text); break
        if ins_at is None: break
        li, w, t = ins_at
        if verbose: print("hz: s_nop %d before line %d: %s" % (w - 1, li, t))
        lines = lines[:li] + ["    s_nop %d" % (w - 1)] + lines[li:]
        total += 1
    return lines
```

```python
import re

class I:
    __slots__ = ("t", "k", "rd", "wr", "after", "ld", "dpp", "srcc", "note", "need", "give")
    def __init__(self, t, k, rd=(), wr=(), after=None, ld=False, dpp=False, srcc=(), note=None):
        self.t = t; self.k = k
        self.rd = set(rd); self.wr = set(wr)
        self.after = after
        self.ld = ld
        self.dpp = dpp
        self.srcc = set(srcc)
        self.note = note
        self.need = set(); self.give = set()
    def N(self, *tok):
        self.need.update(tok); return self
    def G(self, *tok):
        self.give.update(tok); return self
    def __repr__(self):
        return self.t

def R(a, n=1):
    return list(range(a, a + n))
def vr(a, n):
    return "v%d" % a if n == 1 else "v[%d:%d]" % (a, a + n - 1)

def mfma(d, a, b, c=None):
    cs = "0" if c is None else vr(c, 4)
    rd = R(a, 4) + R(b, 4) + ([] if c is None else R(c, 4))
    return I("v_mfma_f32_16x16x32_bf16 %s, %s, %s, %s" % (vr(d, 4), vr(a, 4), vr(b, 4), cs), "M",
             rd=rd, wr=R(d, 4), srcc=([] if c is None else R(c, 4)))
def tr(d, addr, off, after=None):
    return I("ds_read_b64_tr_b16 %s, v%d offset:%d" % (vr(d, 2), addr, off), "L", rd=[addr], wr=R(d, 2), ld=True, after=after)
def rd128(d, addr, off, after=None):
    return I("ds_read_b128 %s, v%d offset:%d" % (vr(d, 4), addr, off), "L", rd=[addr], wr=R(d, 4), ld=True, after=after)
def rd32(d, addr, off=0, after=None):
    return I("ds_read_b32 v%d, v%d offset:%d" % (d, addr, off), "L", rd=[addr], wr=[d], ld=True, after=after)
def V(t, rd=(), wr=(), after=None, dpp=False):
    return I(t, "V", rd=rd, wr=wr, after=after, dpp=dpp)
def S(t, after=None, rd=()):
    return I(t, "S", rd=rd, after=after)

LAT_L = 8
LAT_M = 3

def schedule(main, streams, pos0, pend_hint=(), vec_cap=2, pre_given=()):
    out = []
    streams = [list(s) for s in streams]
    ready = {}
    pend = set(pend_hint)
    given = set(pre_given)
    rfl = [-9]
    gap = 0
    mi = 0
    pos = pos0 - 1
    def head_ok(ins, for_m=False):
        if ins.after == "next":
            if rfl[0] == gap: return False
        elif ins.after is not None and pos < ins.after and mi < len(main):
            return False
        if ins.k == "V" and rfl[0] == gap and mi < len(main): return False
        if not ins.need <= given:
            return False
        for r in ins.rd | ins.wr:
            if ready.get(r, -1) > gap:
                return False
        return True
    def emit(ins):
        need = (ins.rd | ins.wr) & pend
        if need and not (ins.k == "L" and not (ins.rd & pend)):
            out.append(I("WAIT", "W", rd=need))
            pend.difference_update(need)
        out.append(ins)
        if "readfirstlane" in ins.t: rfl[0] = gap
        given.update(ins.give)
        if ins.ld:
            for r in ins.wr:
                ready[r] = gap + LAT_L
                pend.add(r)
        elif ins.k == "M":
            for r in ins.wr:
                ready[r] = gap + LAT_M
        elif ins.k == "V":
            for r in ins.wr:
                ready[r] = gap + (1 if True else 0)
    def remaining():
        return sum(len(s) for s in streams)
    while mi < len(main) or remaining():
        issued = False
        for s in streams:
            if s and s[0].k == "M" and head_ok(s[0]):
                emit_m = s.pop(0); issued = True
                break
        if not issued and mi < len(main):
            emit_m = main[mi]; mi += 1; pos += 1; issued = True
        if issued:
            emit(emit_m)
            if emit_m in main:
                for r in emit_m.wr:
                    ready.pop(r, None)
        gap += 1
        nxt = None
        for s in streams:
            if s and s[0].k == "M" and head_ok(s[0]):
                nxt = s[0]; break
        if nxt is None and mi < len(main):
            nxt = main[mi]
        gapins = []
        scalar_used = False
        if nxt is not None and (nxt.rd & pend):
            need = nxt.rd & pend
            out.append(I("WAIT", "W", rd=need)); pend.difference_update(need)
            scalar_used = True
        nvec = 0
        last = None
        cap = vec_cap if issued else 4
        progress = True
        while progress:
            progress = False
            for s in streams:
                if not s: continue
                h = s[0]
                if h.k == "M" or not head_ok(h): continue
                if h.k == "S":
                    if not scalar_used and nvec == 0:
                        pass
                    elif nvec >= cap:
                        continue
                    if h.rd & pend and scalar_used and nvec + 2 > cap:
                        continue
                    s.pop(0)
                    had = bool(h.rd & pend)
                    emit(h)
                    if not scalar_used and nvec == 0:
                        scalar_used = True
                        if had: nvec += 1
                    else:
                        nvec += 1 + (1 if had else 0)
                    last = h; progress = True
                    break
                if nvec >= cap: continue
                if h.k == "L" and last is not None and last.k == "V": continue
                needw = ((h.rd | h.wr) & pend) if h.k == "V" else (h.rd & pend)
                if needw:
                    if scalar_used or nvec > 0:
                        if nvec + 2 > cap: continue
                        nvec += 1
                    else:
                        scalar_used = True
                elif not scalar_used and nvec == 0 and h.k == "L" and issued:
                    took = False
                    for s2 in streams:
                        if s2 and s2[0].k == "S" and head_ok(s2[0]) and not (s2[0].rd & pend):
                            emit(s2.pop(0)); took = True; break
                    if not took:
                        out.append(I("s_nop 0", "N"))
                    scalar_used = True
                    if not s or s[0] is not h:
                        progress = True
                        break
                s.pop(0)
                emit(h)
                nvec += 1
                last = h; progress = True
                break
        if gap > 2000:
            raise RuntimeError("scheduler stuck: %r" % [s[0] for s in streams if s])
    res = []
    for i, ins in enumerate(out):
        if ins.k == "N":
            j = i + 1; nl = 0
            while j < len(out) and out[j].k != "M":
                if out[j].k == "L": nl += 1
                j += 1
            if nl < 2: continue
        res.append(ins)
    return res

def lgkm_pass(block, state):
    st = dict(state)
    out = []
    def wait_for(regs):
        need = [st[r] for r in regs if r in st]
        if not need: return
        n = min(min(need), 15)
        out.append(I("s_waitcnt lgkmcnt(%d)" % n, "S"))
        for r in list(st):
            if st[r] >= n: del st[r]
    for ins in block:
        if ins.k == "W":
            wait_for(ins.rd); continue
        if ins.k == "L":
            wait_for(ins.rd)
        else:
            wait_for(ins.rd | ins.wr)
        m = re.match(r"s_waitcnt lgkmcnt\((\d+)\)", ins.t)
        if m:
            n = int(m.group(1))
            for r in list(st):
                if st[r] >= n: del st[r]
        out.append(ins)
        if ins.k == "L":
            for r in st: st[r] += 1
            if ins.ld:
                for r in ins.wr: st[r] = 0
    return out, st

def merge_states(states):
    res = {}
    for s in states:
        for r, c in s.items():
            res[r] = min(res.get(r, 99), c)
    return res

def hazard_pass(block, prev=()):
    out = []
    def states_needed(hist, ins):
        need = 0
        d = 0
        for p in reversed(hist):
            if d >= 9: break
            req = 0
            if p.k == "V":
                if ins.k == "M" and (p.wr & ins.rd): req = 2
                if ins.k == "V" and ins.dpp and (p.wr & (ins.rd | (ins.wr if "permlane" in ins.t else set()))): req = 2
                if ins.k == "V" and "readfirstlane" in ins.t and (p.wr & ins.rd): req = max(req, 1)
            if p.k == "M":
                if ins.k in ("V", "L", "X") and (p.wr & (ins.rd | ins.wr)): req = 8
                if ins.k == "M":
                    ab = ins.rd - ins.srcc
                    if p.wr & ab: req = 8
                    elif (p.wr & ins.srcc) and p.wr != ins.srcc: req = 6
                    elif (p.wr & ins.wr) and not (p.wr == ins.srcc): req = 8
                if ins.k == "V" and (p.srcc & ins.wr): req = max(req, 3)
            need = max(need, req - d)
            m = re.match(r"s_nop (\d+)", p.t)
            d += (int(m.group(1)) + 1) if m else 1
        return need
    for ins in block:
        if ins.k in ("M", "V", "L", "X"):
            if len(out) >= 9 or not prev:
                need = states_needed(out, ins)
            else:
                need = max(states_needed(list(p) + out, ins) for p in prev)
            if need > 0:
                out.append(I("s_nop %d" % (need - 1), "S"))
        if ins.k == "N":
            ins = I("s_nop 0", "S")
        out.append(ins)
    return out

def slot_fix(block):
    out = []
    n = len(block)
    for i, ins in enumerate(block):
        if ins.k == "N":
            prev_m = out and out[-1].k == "M"
            if prev_m and i + 2 < n and block[i + 1].k == "L" and block[i + 2].k in ("L", "V"):
                out.append(I("s_nop 0", "S"))
            continue
        if ins.k == "L" and out and out[-1].k == "M" and i + 1 < n and block[i + 1].k == "L":
            out.append(I("s_nop 0", "S"))
        out.append(ins)
    return out
```

```python
import sys
from collections import Counter
from sched import *
import hz

NAME = "standalone__deformable_dcnv1__vision"
args = sys.argv[1:]
DIAG = "--diag" in args
SAFE = "--safe" in args
def opt(name, dflt):
    for a in args:
        if a.startswith("--%s=" % name): return int(a.split("=")[1])
    return dflt
DSK = opt("d", 9)
HD = opt("hd", 0)
HD2 = opt("hd2", 99)
XP = opt("x", 0)
OUT = [a for a in args if not a.startswith("--")][0]

FLG = 256
TBL = 512
WB = 2560
WSLOT = 18432
XB = WB + 3 * WSLOT
LDS_TOTAL = 163840
PB16 = XB + 18 * 4096
PB32 = LDS_TOTAL - 49152
assert PB16 + 24576 <= LDS_TOTAL and XB + 15 * 3648 <= PB32 and XB + 13 * 4096 <= PB32 and XB % 64 == 0

WE, WO = [1, 2, 3], [4, 5, 6]
G16, VTA = 7, 8
SO = [9, 10, 11]
DUM = 12
TB = 16
ET = 20
BF, AF, ACC = 56, 104, 176
GOFF = {"F0": 0, "F1": 24, "F2": 48, "T": 72}
def acc(g, i): return ACC + GOFF[g] + 4 * i
def af(u, i): return AF + (u * 6 + i) * 4
def bf(k, u): return BF + k * 12 + u * 4

SX, SOF, SW, SD = 4, 8, 12, 16
S_WID, S_W, S_R0, S_C0, S_H, S_A0, S_B0, S_TY, S_ST, S_T = range(20, 30)
S_R, S_NC, S_NR1, S_K, S_PB, S_CB, S_MT, S_TS = range(30, 38)
S_RING, S_WD, S_CTL, S_WDM, S_WDP = range(40, 45)
S_RO = {"T": 45, "F0": 46, "F1": 47, "F2": 48}
KP = 88

L = []
def E(x): L.append(x)
def A(s):
    for line in s.strip("\n").split("\n"):
        line = line.strip()
        if line: E(line if line.endswith(":") else "    " + line)
def EB(block):
    for i in block: A(i.t)

LOW = [(u, i) for u in range(3) for i in range(2)]
HI = [(u, i) for u in range(3) for i in range(2, 6)]
ORD = {"T": LOW, "low": LOW + HI, "um": [(u, i) for u in range(3) for i in range(6)]}
SSET = [(2, i) for i in range(2, 6)]
ALLLD = set(R(AF, 72) + R(BF, 48) + R(TB, 4))

def a_reads(u, i, after=None):
    b = (WE if i % 2 == 0 else WO)[i // 2]
    return [tr(af(u, i) + 2 * s, b, u * 6144 + s * 768, after=after) for s in range(2)]
def bitop(k):
    return V("v_bitop3_b32 v%d, v%d, -16, v%d bitop3:0x6a" % (TB + k, TB + k, G16), rd=[TB + k, G16], wr=[TB + k])
def epi_group(g, npairs, t0):
    s = []
    for p in range(npairs):
        t = t0 + 4 * p
        e, o = acc(g, 2 * p), acc(g, 2 * p + 1)
        for d, src in enumerate([e, e + 2, o, o + 2]):
            s.append(V("v_cvt_pk_bf16_f32 v%d, v%d, v%d" % (t + d, src, src + 1), rd=[src, src + 1], wr=[t + d]))
        for d in range(2):
            s.append(V("v_permlane16_swap_b32 v%d, v%d" % (t + d, t + 2 + d), rd=[t + d, t + 2 + d], wr=[t + d, t + 2 + d], dpp=True))
        s.append(I("buffer_store_dwordx4 v[%d:%d], v%d, s[%d:%d], s%d offen" % (t, t + 3, SO[p], SD, SD + 3, S_RO[g]), "X", rd=R(t, 4) + [SO[p]]))
    return s

uid = [0]
def build_body(pos, bar, s_start, s_defer, pref=(0, 1), xwait=False, epi=False, cap=2, b23=4):
    m, lastA, lastB = [], {}, {}
    for k, (g, o) in enumerate(pos):
        for (u, i) in ORD[o]:
            lastA[(u, i)] = len(m); lastB[(k, u)] = len(m)
            m.append(mfma(acc(g, i), af(u, i), bf(k, u), acc(g, i)))
    n = len(m)
    st = []
    s0 = []
    if s_start:
        for (u, i) in SSET: s0 += a_reads(u, i)
    for k in range(2, len(pos)):
        for u in range(3):
            s0.append(rd128(bf(k, u), TB + k, 64 * u, after=b23 + (k - 2) * 3 + u))
    pre = set()
    if s0:
        s0[-1].G("early")
        if s_start: s0[7].G("sdone")
        else: pre.add("sdone")
    else:
        pre |= {"early", "sdone"}
    sal = [S("s_add_u32 s%d, s%d, 1" % (S_RING, S_RING)),
           S("s_cmp_eq_u32 s%d, 3" % S_RING),
           S("s_cselect_b32 s%d, s%d, s%d" % (S_WD, S_WDM, S_WDP)),
           S("s_cselect_b32 s%d, 0, s%d" % (S_RING, S_RING)).G("wd")]
    if xwait:
        uid[0] += 1
        sal.append(S("s_bitcmp1_b32 s%d, 1\ns_cbranch_scc0 L_xw%d\ns_waitcnt vmcnt(0)\nL_xw%d:" % (S_CTL, uid[0], uid[0]), after=bar - 2))
    sal.append(S("s_barrier", after=bar - 1, rd=ALLLD).N("early").G("bar"))
    if SAFE:
        sal.append(S("s_add_u32 s96, s96, 0x400000\ns_cselect_b32 s97, 1, 0\ns_or_b32 s%d, s%d, s97" % (S_CTL, S_CTL), after=n - 3).N("ctl"))
    sal.append(S("s_bitcmp1_b32 s%d, 0" % S_CTL, after=n - 2).N("ctl"))
    wb = [V("v_add_u32 v%d, s%d, v%d" % (w, S_WD, w), rd=[w], wr=[w]) for w in [WE[0], WO[0], WE[1], WO[1], WE[2], WO[2]]]
    wb[0].N("wd", "sdone"); wb[-1].G("wb")
    fr = sorted(lastA, key=lambda f: lastA[f])
    if s_defer: fr = [f for f in fr if f not in SSET]
    rl = []
    f0 = lastA[fr[0]]
    for q, f in enumerate(fr):
        t = lastA[f]
        if s_defer: t = max(t, f0 + int(q * (n - f0) / len(fr)))
        rl += a_reads(f[0], f[1], after=t)
    rl[0].N("bar", "wb")
    tb = [rd128(TB, VTA, 0).N("bar"),
          V("v_xor_b32 v%d, 0x100, v%d" % (VTA, VTA), rd=[VTA], wr=[VTA]),
          bitop(0), bitop(1).G("t01"),
          V("v_readfirstlane_b32 s%d, v%d" % (S_CTL, TB + 3), rd=[TB + 3]).G("ctl"),
          bitop(2), bitop(3)]
    tb[5].after = "next"
    pf = []
    for k in pref:
        for u in range(3):
            pf.append(rd128(bf(k, u), TB + k, 64 * u, after=lastB.get((k, u))).N("t01"))
    pf.sort(key=lambda x: -1 if x.after is None else x.after)
    st = [tb, pf, s0, rl, sal, wb]
    if epi:
        st.append(epi_group("F0", 3, ET) + epi_group("T", 1, ET + 12))
    return schedule(m, st, 0, pend_hint=ALLLD, vec_cap=cap, pre_given=pre)

def build_pre():
    b = [rd128(TB, VTA, 0)]
    for (u, i) in ORD["low"]: b += a_reads(u, i)
    b.insert(15, V("v_xor_b32 v%d, 0x100, v%d" % (VTA, VTA), rd=[VTA], wr=[VTA]))
    b[16:16] = [bitop(0), bitop(1), V("v_readfirstlane_b32 s%d, v%d" % (S_CTL, TB + 3), rd=[TB + 3]), bitop(2), bitop(3)] + \
               [rd128(bf(k, u), TB + k, 64 * u) for k in (0, 1) for u in range(3)]
    return b

blocks = {}
blocks["PRE"] = build_pre()
blocks["HA"] = build_body([("T", "T"), ("F0", "low")], 6, False, False, xwait=True, cap=3)
blocks["HB"] = build_body([("F0", "um")], 2, False, False, xwait=True, cap=3)
blocks["FA"] = build_body([("T", "T"), ("F0", "low"), ("F1", "low"), ("F2", "low")], 25, True, True)
blocks["FB"] = build_body([("F0", "low"), ("F1", "low"), ("F2", "low")], 20, True, True)
blocks["FC"] = build_body([("T", "T"), ("F0", "low"), ("F1", "low")], 15, True, True)
blocks["L2F"] = build_body([("F1", "low"), ("F2", "low")], 13, True, True, epi=True)
blocks["L2"] = build_body([("F1", "low"), ("F2", "low")], 13, True, True)
blocks["L1F"] = build_body([("F1", "um")], 11, True, False, pref=(0,), epi=True, cap=3)
blocks["L1"] = build_body([("F1", "um")], 2, False, False, pref=(0,), cap=3)
preds = {"PRE": [], "HA": ["PRE", "HA"], "HB": ["PRE", "HB"], "FA": ["HA", "FA"], "FC": ["HA", "FC"], "FB": ["HB", "FB"],
         "L2F": ["FA", "FB"], "L2": ["L2F", "L2"], "L1F": ["FC"], "L1": ["L1F", "L1"]}
exits = {n: {} for n in blocks}
final = {}
for it in range(8):
    changed = False
    for n in blocks:
        ent = merge_states([exits[p] for p in preds[n]])
        b, ex = lgkm_pass(blocks[n], ent)
        final[n] = b
        mx = merge_states([exits[n], ex])
        if mx != exits[n]:
            exits[n] = mx; changed = True
    if not changed: break
assert not changed
for n in blocks: final[n] = slot_fix(final[n])

HDR = ["; deformable conv v1 (5x5, C=96): implicit GEMM on 16x16x32 bf16 MFMA, one 16-pixel-wide patch per workgroup",
       "; waves 0-3: MFMA waves (table driven gather), waves 4-7: weight streaming, sampling positions, bilinear fix-ups",
       "; @launch grid=(256,1,1) block=(512,1,1) lds=%d" % LDS_TOTAL,
       '.amdgcn_target "amdgcn-amd-amdhsa--gfx950"', ".text", ".globl %s_kernel" % NAME, ".p2align 8",
       ".type %s_kernel,@function" % NAME, "%s_kernel:" % NAME]
def stamp(idx, w=False):
    if DIAG:
        A("s_memtime s[%d:%d]" % (60 + 2 * idx, 61 + 2 * idx))
        if w: A("s_waitcnt lgkmcnt(0)")

stamp(0)
if DIAG: A("s_memrealtime s[76:77]")
A(f"""
s_load_dwordx8 s[{KP}:{KP+7}], s[0:1], 0
s_cmp_ge_u32 s2, 256
s_cbranch_scc1 L_end
v_lshrrev_b32 v1, 6, v0
v_and_b32 v0, 63, v0
s_and_b32 s3, s2, 7
s_lshl_b32 s3, s3, 5
s_lshr_b32 s39, s2, 3
v_readfirstlane_b32 s{S_WID}, v1
s_add_u32 s3, s3, s39
s_mov_b32 s{S_TY}, 1
s_mov_b32 s{S_H}, 12
s_cmp_lt_u32 s3, 216
s_cbranch_scc1 L_greg
s_cmp_lt_u32 s3, 235
s_cbranch_scc1 L_gc1
s_sub_u32 s{S_T}, s3, 235
s_mov_b32 s{S_CB}, 0
s_mul_i32 s{S_R0}, s{S_T}, 11
s_sub_u32 s{S_R0}, s{S_R0}, 7
s_mov_b32 s{S_H}, 11
s_cmp_ge_u32 s{S_T}, 4
s_cbranch_scc1 L_gdone
s_mul_i32 s{S_R0}, s{S_T}, 9
s_cmp_eq_u32 s{S_T}, 3
s_cselect_b32 s{S_H}, 10, 9
s_cselect_b32 s{S_TY}, 1, 2
s_branch L_gdone
L_gc1:
s_sub_u32 s{S_T}, s3, 216
s_mov_b32 s{S_CB}, 1
s_branch L_g12
L_greg:
s_mul_i32 s{S_T}, s3, 5462
s_lshr_b32 s{S_T}, s{S_T}, 16
s_mul_i32 s{S_CB}, s{S_T}, 12
s_sub_u32 s{S_CB}, s3, s{S_CB}
s_add_u32 s{S_CB}, s{S_CB}, 2
s_cmp_lt_u32 s{S_T}, 3
s_cbranch_scc1 L_g12
s_mul_i32 s{S_R0}, s{S_T}, 13
s_sub_u32 s{S_R0}, s{S_R0}, 6
s_mov_b32 s{S_TY}, 0
s_mov_b32 s{S_H}, 13
s_branch L_gdone
L_g12:
s_mul_i32 s{S_R0}, s{S_T}, 12
s_sub_u32 s{S_R0}, s{S_R0}, 3
s_cmp_eq_u32 s{S_T}, 0
s_cselect_b32 s{S_R0}, 0, s{S_R0}
s_cselect_b32 s{S_TY}, 2, 1
s_cselect_b32 s{S_H}, 9, 12
L_gdone:
s_sub_u32 s{S_T}, 224, s{S_R0}
s_min_u32 s{S_H}, s{S_H}, s{S_T}
s_lshl_b32 s{S_C0}, s{S_CB}, 4
s_and_b32 s{S_W}, s{S_WID}, 3
s_sub_u32 s{S_T}, s{S_R0}, 3
s_cmp_le_u32 s{S_T}, 31
s_cselect_b32 s{S_MT}, 1, 0
s_sub_i32 s{S_A0}, s{S_R0}, s{S_MT}
s_sub_i32 s{S_A0}, s{S_A0}, 2
s_max_i32 s{S_A0}, s{S_A0}, 0
s_add_u32 s{S_R}, s{S_R0}, s{S_H}
s_cmp_le_u32 s{S_R}, 30
s_addc_u32 s{S_R}, s{S_R}, 1
s_min_u32 s{S_R}, s{S_R}, 223
s_sub_u32 s{S_R}, s{S_R}, s{S_A0}
s_lshl_b32 s{S_NR1}, s{S_MT}, 1
s_add_u32 s{S_NR1}, s{S_NR1}, 5
s_cmp_le_u32 s{S_CB}, 2
s_cselect_b32 s{S_NC}, 21, 20
s_subb_u32 s{S_B0}, s{S_C0}, 2
s_mov_b32 s{S_ST}, 4096
s_cmp_eq_u32 s{S_CB}, 13
s_cselect_b32 s{S_NC}, 18, s{S_NC}
s_cmp_eq_u32 s{S_CB}, 0
s_cselect_b32 s{S_NC}, 19, s{S_NC}
s_cselect_b32 s{S_B0}, 0, s{S_B0}
s_cselect_b32 s{S_ST}, 3648, s{S_ST}
s_cmp_lg_u32 s{S_TY}, 1
s_cselect_b32 s{S_TS}, 1, 0
s_mov_b32 s{SX+2}, 9633792
s_mov_b32 s{SX+3}, 0x00020000
s_mov_b32 s{SW+2}, 460800
s_mov_b32 s{SW+3}, 0x00020000
s_cmp_ge_u32 s{S_WID}, 4
s_cbranch_scc1 L_helper
""")

A(f"""
s_lshl_b32 s{S_T}, s{S_W}, 6
v_add_u32 v2, s{S_T}, v0
v_mul_u32_u24 v3, 171, v2
v_lshrrev_b32 v3, 11, v3
v_mul_u32_u24 v4, 12, v3
v_sub_u32 v4, v2, v4
v_add_u32 v3, s{S_B0}, v3
v_lshrrev_b32 v5, 1, v3
v_and_b32 v5, 2, v5
v_xor_b32 v4, v4, v5
v_min_u32 v3, 223, v3
v_mul_u32_u24 v3, 192, v3
v_lshl_add_u32 v20, v4, 4, v3
s_mul_i32 s50, s{S_NC}, 12
s_sub_u32 s50, s50, 192
s_bfm_b64 s[52:53], s50, 0
s_cmp_eq_u32 s{S_W}, 3
s_cselect_b64 s[52:53], s[52:53], -1
s_mul_i32 s50, s{S_A0}, 43008
s_lshl_b32 s51, s{S_W}, 10
s_add_u32 s51, s51, {XB}
s_mul_i32 s54, s{S_NR1}, 43008
s_add_u32 s54, s54, s50
s_mul_i32 s55, s{S_NR1}, s{S_ST}
s_add_u32 s55, s55, s51
s_mul_i32 s56, s{S_R}, 43008
s_add_u32 s56, s56, s50
s_mul_i32 s57, s{S_R}, s{S_ST}
s_add_u32 s57, s57, s51
s_mov_b32 m0, s51
s_mov_b64 exec, s[52:53]
s_waitcnt lgkmcnt(0)
s_mov_b32 s{SX}, s{KP}
s_and_b32 s{SX+1}, s{KP+1}, 0xffff
s_mov_b32 s{SW}, s{KP+4}
s_and_b32 s{SW+1}, s{KP+5}, 0xffff
""")
def xload(lim_so, lim_m):
    A(f"""
buffer_load_dwordx4 v20, s[{SX}:{SX+3}], s50 offen lds
s_add_u32 m0, m0, s{S_ST}
s_min_u32 m0, m0, s{lim_m}
s_add_u32 s50, s50, 43008
s_min_u32 s50, s50, s{lim_so}
""")
for i in range(7): xload(54, 55)
xload(56, 57)
A(f"""
s_mov_b64 exec, -1
s_lshl_b32 s{S_T}, s{S_W}, 5
s_add_u32 s{S_T}, s{S_T}, s39
s_lshl_b32 s{S_T}, s{S_T}, 10
v_lshlrev_b32 v21, 4, v0
""")
for l in range(4):
    A(f"buffer_load_dwordx4 v[{DUM}:{DUM+3}], v21, s[{SW}:{SW+3}], s{S_T} offen")
    if l < 3: A(f"s_add_u32 s{S_T}, s{S_T}, 131072")
A("s_mov_b64 exec, s[52:53]")
for i in range(12): xload(56, 57)
A(f"""
s_mov_b64 exec, -1
s_setprio 2
s_mov_b32 s{SD}, s{KP+6}
s_and_b32 s{SD+1}, s{KP+7}, 0xffff
s_mov_b32 s{SD+2}, 9633792
s_mov_b32 s{SD+3}, 0x00020000
v_lshrrev_b32 v20, 4, v0
v_and_b32 v21, 15, v0
v_bfe_u32 v22, v0, 2, 2
v_and_b32 v23, 3, v0
v_lshlrev_b32 v25, 2, v0
v_mov_b32 v26, 0
ds_write_b32 v25, v26
v_lshlrev_b32 v{G16}, 4, v20
s_lshl_b32 s{S_T}, s{S_W}, 9
s_add_u32 s{S_T}, s{S_T}, {TBL}
v_lshl_add_u32 v{VTA}, v21, 4, s{S_T}
v_mul_u32_u24 v24, 1536, v20
v_mul_u32_u24 v25, 192, v22
v_lshlrev_b32 v26, 3, v23
v_add3_u32 v24, v24, v25, v26
v_lshlrev_b32 v25, 5, v20
v_and_b32 v25, 32, v25
v_add_u32 v24, {WB}, v24
v_or_b32 v24, v24, v25
v_mul_u32_u24 v21, 192, v21
v_lshlrev_b32 v22, 3, v20
v_and_b32 v22, 16, v22
v_add3_u32 v21, v21, v22, v25
s_cmp_eq_u32 s{S_W}, 3
s_cselect_b32 s50, 0, s{S_W}
s_lshl_b32 s50, s50, 6
""")
for j in range(3):
    A(f"""
v_add_u32 v{WE[j]}, s50, v24
v_add_u32 v{SO[j]}, s50, v21
s_add_u32 s50, s50, 64
s_cmp_eq_u32 s50, 192
s_cselect_b32 s50, 0, s50
v_xor_b32 v{WO[j]}, 32, v{WE[j]}
""")
A(f"""
s_mov_b32 s{S_WDM}, {(-2*WSLOT) & 0xffffffff}
s_mov_b32 s{S_WDP}, {WSLOT}
s_mov_b32 s{S_RING}, 0
s_mov_b32 s96, 0
s_mul_i32 s51, s{S_C0}, 192
""")
for g, expr in (("F0", 0), ("F1", 4), ("F2", 8), ("T", None)):
    r = S_RO[g]
    if g == "F0": A(f"s_mov_b32 s50, s{S_W}")
    elif g == "T":
        A(f"s_cmp_eq_u32 s{S_W}, 3\ns_cselect_b32 s50, 99, 4\ns_cmp_eq_u32 s{S_TS}, 0\ns_cselect_b32 s50, 99, s50")
    else: A(f"s_add_u32 s50, s{S_W}, s{S_TS}\ns_add_u32 s50, s50, {expr}")
    A(f"""
s_add_u32 s{r}, s50, s{S_R0}
s_mul_i32 s{r}, s{r}, 43008
s_add_u32 s{r}, s{r}, s51
s_cmp_lt_u32 s50, s{S_H}
s_cselect_b32 s{r}, s{r}, 0x40000000
""")
for r in range(ACC, 256): A("v_mov_b32 v%d, 0" % r)
A("s_waitcnt vmcnt(16) lgkmcnt(0)")
stamp(1)
A("s_barrier\ns_barrier")
stamp(2, True)
EB(final["PRE"])
A(f"s_cmp_eq_u32 s{S_TY}, 1\ns_cbranch_scc1 L_HB")
def loop(n, exit_first=False):
    if not exit_first: E(".p2align 6")
    E(f"L_{n}:")
    EB(final[n])
    A("s_cbranch_scc1 L_epi" if exit_first else f"s_cbranch_scc0 L_{n}")
loop("HA")
stamp(3, True)
A(f"s_cmp_eq_u32 s{S_TY}, 2\ns_cbranch_scc1 L_FC")
loop("FA")
E("L_toL2:")
stamp(4, True)
loop("L2F", True)
loop("L2")
E("L_epi:")
stamp(5)
A("s_nop 7")
EB(epi_group("F1", 3, ET + 16))
A(f"s_cmp_eq_u32 s{S_TY}, 2\ns_cbranch_scc1 L_fin")
EB(epi_group("F2", 3, BF))
E("L_fin:")
if DIAG:
    A("s_waitcnt vmcnt(0)")
    stamp(6)
    A(f"""
s_memrealtime s[78:79]
s_load_dwordx2 s[80:81], s[0:1], 40
s_lshl_b32 s50, s2, 2
s_add_u32 s50, s50, s{S_W}
s_lshl_b32 s50, s50, 6
v_mov_b32 v20, s50
s_waitcnt lgkmcnt(0)
""")
    for i, r in enumerate([60, 62, 64, 70, 72, 76, 78, 66, 68, 3]):
        A(f"v_mov_b32 v21, s{r}")
        A(f"global_store_dword v20, v21, s[80:81] offset:{4*i}")
A("s_endpgm")
loop("HB")
stamp(3, True)
loop("FB")
A("s_branch L_toL2")
loop("FC")
stamp(4, True)
loop("L1F", True)
loop("L1")
A("s_branch L_epi")

H_ACT, H_G2, H_EXC, H_FY, H_OOB, H_T, H_T2 = 40, 42, 44, 46, 48, 50, 52
(H_LO, H_HI, H_HIF, H_223, H_J, H_EV, H_TAP, H_KJ, H_WS, H_WCUR, H_WL, H_RING, H_D5, H_CTL, H_CNT, H_MODE, H_RND, H_REM,
 H_PW, H_PN, H_PSUM, H_STEP, H_S1, H_S2, H_FL, H_BSEL, H_NG) = range(54, 81)
BY, BX, VTW, VTWT, VFL, VFR, TV, RANK = 1, 2, 3, 4, 5, 6, 8, 9
C0 = 10
CC16, PWS = 14, 15
SEL = [16, 17, 18, 19]
PWC, V192, VORG, VZ = 20, 21, 22, 23
P_, Q_, FY_, FX_, IY, IX, WY, WX, E0, E1, C01, C23, IY1, IX1, DST = range(26, 41)
T0, T1, T2, T3 = 41, 42, 43, 44
FLV, VBP, HG16 = 46, 47, 7
GR = [48, 72]
OFF = 100
WV = [125, 126, 127, 96, 97]
HR = [128, 152]
CB = [176, 184]
AR = [192, 196]
E("L_helper:")
A(f"""
v_lshrrev_b32 v20, 4, v0
v_and_b32 v21, 15, v0
v_min_u32 v22, 1, v20
v_mul_u32_u24 v22, s{S_TS}, v22
v_lshl_add_u32 v22, v20, 2, v22
v_add_u32 v22, s{S_W}, v22
v_cmp_eq_u32 vcc, 3, v20
s_lshl_b32 s{S_T}, s{S_W}, 2
v_lshrrev_b32 v23, 2, v21
v_add_u32 v23, s{S_T}, v23
v_cndmask_b32 v22, v22, 4, vcc
v_cndmask_b32 v23, v21, v23, vcc
v_add_u32 v24, s{S_R0}, v22
v_add_u32 v25, s{S_C0}, v23
v_min_u32 v24, 223, v24
v_mul_u32_u24 v26, 224, v24
v_add_u32 v26, v26, v25
v_mul_u32_u24 v26, 100, v26
s_mov_b32 s{SOF+2}, 5017600
s_mov_b32 s{SOF+3}, 0x00020000
s_cmp_eq_u32 s{S_TY}, 1
s_cselect_b32 exec_hi, 0, 0xffff0000
s_mov_b32 exec_lo, 0xffff
s_waitcnt lgkmcnt(0)
s_mov_b32 s{SOF}, s{KP+2}
s_and_b32 s{SOF+1}, s{KP+3}, 0xffff
s_mov_b32 s{SW}, s{KP+4}
s_and_b32 s{SW+1}, s{KP+5}, 0xffff
s_mov_b32 s{SX}, s{KP}
s_and_b32 s{SX+1}, s{KP+1}, 0xffff
""")
def off_loads():
    for c in range(6):
        A(f"buffer_load_dwordx4 v[{OFF+4*c}:{OFF+4*c+3}], v26, s[{SOF}:{SOF+3}], 0 offen offset:{16*c}")
    A(f"buffer_load_dword v{OFF+24}, v26, s[{SOF}:{SOF+3}], 0 offen offset:96")
off_loads()
A(f"""
s_mov_b64 exec, -1
s_lshl_b32 s{H_S1}, s{S_W}, 8
s_and_b32 s{H_S2}, s{S_W}, 1
s_lshl_b32 s{H_S2}, s{H_S2}, 6
s_add_u32 s{H_S2}, s{H_S2}, 1024
""")
for m in range(5):
    if m < 4: A(f"v_add_u32 v27, s{H_S1}, v0\nv_add_u32 v28, {64*m}, v27")
    else: A(f"v_add_u32 v27, s{H_S2}, v0\nv_mov_b32 v28, v27")
    A(f"""
v_mul_u32_u24 v28, 683, v28
v_lshrrev_b32 v28, 11, v28
v_and_b32 v28, 32, v28
v_lshlrev_b32 v27, 4, v27
v_xor_b32 v{WV[m]}, v27, v28
""")
A(f"""
s_sub_u32 s{H_D5}, s{H_S2}, s{H_S1}
s_lshl_b32 s{H_D5}, s{H_D5}, 4
s_lshl_b32 s{H_WL}, s{S_W}, 12
s_add_u32 s{H_WL}, s{H_WL}, {WB}
s_mov_b32 s{H_RING}, 0
s_mov_b32 s{H_WCUR}, 0
s_mov_b32 s82, {(-2*WSLOT) & 0xffffffff}
s_mov_b32 s83, {WSLOT}
""")
def w_issue():
    A(f"""
s_mov_b32 m0, s{H_WL}
s_add_u32 s{H_RING}, s{H_RING}, 1
buffer_load_dwordx4 v{WV[0]}, s[{SW}:{SW+3}], s{H_WCUR} offen lds
s_cmp_eq_u32 s{H_RING}, 3
buffer_load_dwordx4 v{WV[1]}, s[{SW}:{SW+3}], s{H_WCUR} offen offset:1024 lds
s_cselect_b32 s{H_S1}, s82, s83
buffer_load_dwordx4 v{WV[2]}, s[{SW}:{SW+3}], s{H_WCUR} offen offset:2048 lds
s_cselect_b32 s{H_RING}, 0, s{H_RING}
buffer_load_dwordx4 v{WV[3]}, s[{SW}:{SW+3}], s{H_WCUR} offen offset:3072 lds
s_add_u32 m0, s{H_WL}, s{H_D5}
s_add_u32 s{H_WL}, s{H_WL}, s{H_S1}
buffer_load_dwordx4 v{WV[4]}, s[{SW}:{SW+3}], s{H_WCUR} offen lds
""")
w_issue()
A(f"s_mov_b32 s{H_WCUR}, {WSLOT}")
w_issue()
A(f"""
s_cmp_eq_u32 s{S_TY}, 2
s_cselect_b32 exec_hi, 0, 0xffff
s_mov_b32 exec_lo, 0xffff0000
""")
off_loads()
def fmap(f): return sum(x << (2 * i) for i, x in enumerate(f))
A(f"""
s_mov_b64 exec, -1
v_cmp_gt_u32 s[{H_T}:{H_T+1}], s{S_H}, v22
s_cmp_eq_u32 s{S_TY}, 1
s_cselect_b32 s{H_S1}, 0, 0x11110000
s_and_b32 s{H_ACT}, s{H_T}, 0xffff
s_and_b32 s{H_ACT+1}, s{H_T+1}, s{H_S1}
s_and_b32 s{H_G2}, s{H_T}, 0xffff0000
s_and_b32 s{H_G2+1}, s{H_T+1}, 0xffff
v_cvt_f32_u32 v{BY}, v24
v_cvt_f32_u32 v{BX}, v25
v_add_f32 v{BY}, -2.0, v{BY}
v_add_f32 v{BX}, -2.0, v{BX}
s_cmp_eq_u32 s{S_TY}, 1
s_mov_b32 s{H_S1}, {fmap([1,2,3,0])}
s_mov_b32 s{H_S2}, {fmap([3,0,1,2])}
s_cselect_b32 s{H_S1}, {fmap([0,1,2,3])}, s{H_S1}
s_cselect_b32 s{H_S2}, {fmap([2,0,1,3])}, s{H_S2}
v_lshlrev_b32 v27, 1, v20
v_and_b32 v28, 3, v0
v_mov_b32 v29, s{S_W}
v_cndmask_b32 v28, v29, v28, vcc
v_lshlrev_b32 v28, 9, v28
v_lshl_add_u32 v28, v23, 4, v28
v_add_u32 v28, {TBL}, v28
v_lshrrev_b32 v29, v27, s{H_S1}
v_and_b32 v29, 3, v29
v_lshl_add_u32 v{VTW}, v29, 2, v28
v_lshrrev_b32 v29, v27, s{H_S2}
v_and_b32 v29, 3, v29
v_lshl_add_u32 v{VTWT}, v29, 2, v28
s_add_u32 s{S_T}, s{S_W}, {FLG}
v_mov_b32 v{VFL}, s{S_T}
v_mov_b32 v{VFR}, {FLG}
v_mov_b32 v{VZ}, 0
v_mov_b32 v{V192}, 192
s_mul_i32 s{H_S1}, s{S_A0}, s{S_ST}
s_mul_i32 s{H_S2}, s{S_B0}, 192
s_add_u32 s{H_S1}, s{H_S1}, s{H_S2}
s_sub_u32 s{H_S1}, {XB}, s{H_S1}
v_mov_b32 v{VORG}, s{H_S1}
ds_write_b8 v{VFL}, v{VZ}
v_lshlrev_b32 v{HG16}, 4, v20
v_and_b32 v27, 3, v0
v_bfe_u32 v28, v0, 2, 2
v_lshlrev_b32 v{CC16}, 4, v27
v_lshl_add_u32 v29, v27, 2, v28
v_mul_u32_u24 v29, 192, v29
v_xor_b32 v30, v20, v27
v_lshl_add_u32 v{PWS}, v30, 4, v29
v_lshlrev_b32 v29, 4, v28
v_lshl_add_u32 v{VBP}, v27, 6, v29
v_and_b32 v29, 1, v28
v_lshrrev_b32 v30, 1, v28
v_mov_b32 v31, 0x0c0c0100
v_mov_b32 v32, 0x01000c0c
v_cmp_eq_u32 vcc, 1, v29
v_mov_b32 v33, 0x0c0c0302
v_mov_b32 v34, 0x03020c0c
v_cmp_eq_u32 s[{H_T}:{H_T+1}], v27, v20
v_cndmask_b32 v31, v31, v32, vcc
v_cndmask_b32 v33, v33, v34, vcc
v_cmp_eq_u32 s[{H_T2}:{H_T2+1}], 0, v30
v_mov_b32 v32, 0x0c0c0c0c
s_and_b64 s[{H_FY}:{H_FY+1}], s[{H_T}:{H_T+1}], s[{H_T2}:{H_T2+1}]
s_andn2_b64 s[{H_OOB}:{H_OOB+1}], s[{H_T}:{H_T+1}], s[{H_T2}:{H_T2+1}]
v_cndmask_b32 v{SEL[0]}, v32, v31, s[{H_FY}:{H_FY+1}]
v_cndmask_b32 v{SEL[1]}, v32, v31, s[{H_OOB}:{H_OOB+1}]
v_cndmask_b32 v{SEL[2]}, v32, v33, s[{H_FY}:{H_FY+1}]
v_cndmask_b32 v{SEL[3]}, v32, v33, s[{H_OOB}:{H_OOB+1}]
s_add_u32 s{H_S1}, s{S_A0}, s{S_NR1}
s_add_u32 s{H_S2}, s{S_B0}, s{S_NC}
s_sub_u32 s{H_S2}, s{H_S2}, 1
s_add_u32 s{S_T}, s{S_A0}, s{S_R}
v_cvt_f32_u32 v27, s{S_A0}
v_cvt_f32_u32 v28, s{S_B0}
v_cvt_f32_u32 v29, s{H_S1}
v_cvt_f32_u32 v30, s{H_S2}
v_cvt_f32_u32 v31, s{S_T}
v_cvt_pk_bf16_f32 v27, v27, v28
v_cvt_pk_bf16_f32 v29, v29, v30
v_cvt_pk_bf16_f32 v31, v31, v30
s_mov_b32 s{H_223}, 0x435f435f
v_readfirstlane_b32 s{H_LO}, v27
v_readfirstlane_b32 s{H_HI}, v29
v_readfirstlane_b32 s{H_HIF}, v31
s_cmp_eq_u32 s{S_CB}, 0
s_cselect_b32 s{H_S1}, 0, s{S_R0}
s_cmp_eq_u32 s{H_S1}, 0
s_cselect_b32 s{S_K}, 32, 16
s_mov_b32 s{S_PB}, {PB16}
s_cselect_b32 s{S_PB}, {PB32}, s{S_PB}
s_mul_i32 s{H_S1}, s{S_K}, 192
s_mul_i32 s{H_PN}, s{H_S1}, s{S_W}
s_add_u32 s{H_PN}, s{H_PN}, s{S_PB}
s_lshl_b32 s{H_S1}, s{H_S1}, 2
s_lshl_b32 s{H_PSUM}, s{H_PN}, 1
s_add_u32 s{H_PSUM}, s{H_PSUM}, s{H_S1}
s_mov_b32 s{H_J}, 0
s_mov_b32 s{H_EV}, {DSK-2}
s_mov_b32 s{H_TAP}, 0
s_mov_b32 s{H_KJ}, 0
s_mov_b32 s{H_WS}, 0
s_mov_b32 s{H_CTL}, 0
s_mov_b32 s{H_RND}, 0
s_mov_b32 s{H_STEP}, 0
s_mov_b32 s{H_BSEL}, 0
s_waitcnt vmcnt(17)
""")
if HD:
    for k in range(9): A("v_mov_b32 v%d, 0" % (200 + k))
A("s_branch L_adv")
def hs(k): return ("s_memtime s[%d:%d]" % (84 + 2 * k, 85 + 2 * k)) if HD else ""
def hacc():
    if not HD: return ""
    t = "s_waitcnt lgkmcnt(0)\ns_cmp_lt_u32 s%d, %d\ns_cbranch_scc1 L_hskip\ns_cmp_gt_u32 s%d, %d\ns_cbranch_scc1 L_hskip\n" % (H_J, HD, H_J, HD2)
    for k in range(7):
        t += "s_sub_u32 s81, s%d, s%d\nv_add_u32 v%d, s81, v%d\n" % (86 + 2 * k, 84 + 2 * k, 200 + k, 200 + k)
    t += "s_sub_u32 s81, s84, s100\nv_add_u32 v207, s81, v207\nv_add_u32 v208, 1, v208\nL_hskip:\ns_mov_b32 s100, s98\n"
    return t
def hout():
    if not HD: return ""
    t = "s_load_dwordx2 s[84:85], s[0:1], 40\ns_lshl_b32 s81, s2, 2\ns_add_u32 s81, s81, s%d\ns_lshl_b32 s81, s81, 6\ns_add_u32 s81, s81, 0x10000\nv_mov_b32 v20, s81\ns_waitcnt lgkmcnt(0)\n" % S_W
    for k in range(9): t += "global_store_dword v20, v%d, s[84:85] offset:%d\n" % (200 + k, 4 * k)
    return t
def sp(r): return f"s[{r}:{r+1}]"
def qp(c): return "quad_perm:[%d,%d,%d,%d] row_mask:0xf bank_mask:0xf" % (c, c, c, c)
E(".p2align 6")
A(f"""
L_step:
{hs(0)}
ds_write_b32 v{VTW}, v{TV}
ds_read_b32 v{FLV}, v{VFR}
ds_write_b8 v{VFL}, v{VZ}
v_xor_b32 v{VTW}, 0x100, v{VTW}
v_xor_b32 v{VFR}, 4, v{VFR}
s_mov_b32 s{H_BSEL}, 0
s_cmp_lg_u32 s{H_CNT}, 0
s_cbranch_scc1 L_B1
s_waitcnt lgkmcnt(1)
L_dec:
{hs(1)}
v_readfirstlane_b32 s{H_FL}, v{FLV}
s_or_b32 s{H_S1}, s{H_FL}, s{H_RND}
s_cbranch_scc1 L_rep
L_adv:
s_cmp_eq_u32 s{H_J}, s{H_EV}
s_cbranch_scc1 L_event
L_adv2:
s_set_gpr_idx_on s{H_TAP}, gpr_idx(SRC1)
s_add_u32 s{H_KJ}, s{H_KJ}, 1
v_lshlrev_b32 v24, 16, v{OFF}
v_and_b32 v25, 0xffff0000, v{OFF}
s_set_gpr_idx_off
s_cmp_eq_u32 s{H_KJ}, 5
s_cselect_b32 s{H_S1}, 0xc0800000, 1.0
s_cselect_b32 s{H_S2}, 1.0, 0
s_cselect_b32 s{H_KJ}, 0, s{H_KJ}
v_add_f32 v24, v{BY}, v24
v_add_f32 v25, v{BX}, v25
v_add_f32 v{BX}, s{H_S1}, v{BX}
v_cvt_pk_bf16_f32 v{P_}, v24, v25
v_add_f32 v{BY}, s{H_S2}, v{BY}
v_pk_max_i16 v{P_}, v{P_}, 0
s_mov_b32 s{H_WCUR}, s{H_WS}
v_pk_min_i16 v{P_}, v{P_}, s{H_223}
s_add_u32 s{H_WS}, s{H_WS}, {WSLOT}
v_pk_max_i16 v{Q_}, v{P_}, s{H_LO}
v_lshlrev_b32 v{FY_}, 16, v{P_}
v_and_b32 v{FX_}, 0xffff0000, v{P_}
v_pk_min_i16 v{Q_}, v{Q_}, s{H_HI}
v_cvt_u32_f32 v{IX}, v{FX_}
v_cvt_u32_f32 v{IY}, v{FY_}
v_cmp_ne_u32 {sp(H_OOB)}, v{Q_}, v{P_}
v_fract_f32 v{WY}, v{FY_}
v_fract_f32 v{WX}, v{FX_}
v_mad_u32_u24 v{E0}, v{IX}, v{V192}, v{VORG}
v_lshlrev_b32 v{T0}, 3, v{IX}
v_cmp_lt_f32 {sp(H_FY)}, 0, v{WY}
v_cmp_lt_f32 vcc, 0, v{WX}
v_and_or_b32 v{E0}, v{T0}, 32, v{E0}
s_add_u32 s{H_TAP}, s{H_TAP}, 1
v_mad_u32_u24 v{E0}, v{IY}, s{S_ST}, v{E0}
s_add_u32 s{H_J}, s{H_J}, 1
s_mov_b32 s{H_CNT}, 0
s_or_b64 {sp(H_T)}, {sp(H_FY)}, vcc
s_or_b64 {sp(H_T)}, {sp(H_T)}, {sp(H_OOB)}
v_or_b32 v{TV}, s{H_CTL}, v{E0}
{hs(2)}
s_waitcnt lgkmcnt(0)
{hs(3)}
s_and_b64 {sp(H_EXC)}, {sp(H_T)}, {sp(H_ACT)}
s_cbranch_scc0 L_Adone
v_mbcnt_lo_u32_b32 v{RANK}, s{H_EXC}, 0
v_addc_co_u32 v{IX1}, {sp(H_T)}, 0, v{IX}, vcc
v_mbcnt_hi_u32_b32 v{RANK}, s{H_EXC+1}, v{RANK}
v_addc_co_u32 v{IY1}, {sp(H_T)}, 0, v{IY}, {sp(H_FY)}
s_bcnt1_i32_b64 s{H_CNT}, {sp(H_EXC)}
s_or_b32 s{H_S1}, s{H_PN}, s{H_CTL}
v_mad_u32_u24 v{E1}, v{IX1}, v{V192}, v{VORG}
v_lshlrev_b32 v{T0}, 3, v{IX1}
v_cndmask_b32 v{DST}, 63, v{RANK}, {sp(H_EXC)}
v_mad_u32_u24 v{T1}, v{RANK}, v{V192}, s{H_S1}
v_lshlrev_b32 v{T2}, 2, v{RANK}
v_and_or_b32 v{E1}, v{T0}, 32, v{E1}
v_add_f32 v{T3}, v{WY}, v{WX}
v_and_or_b32 v{T1}, v{T2}, 48, v{T1}
v_lshrrev_b32 v{T0}, 2, v{DST}
v_sub_f32 v{C01}, 1.0, v{T3}
v_cndmask_b32 v{TV}, v{TV}, v{T1}, {sp(H_EXC)}
v_lshl_or_b32 v{DST}, v{DST}, 4, v{T0}
v_mad_u32_u24 v{E1}, v{IY1}, s{S_ST}, v{E1}
v_cvt_pk_bf16_f32 v{C01}, v{C01}, v{T3}
s_mov_b32 s{H_MODE}, 1
s_and_b64 {sp(H_T2)}, {sp(H_FY)}, vcc
s_or_b64 {sp(H_T2)}, {sp(H_T2)}, {sp(H_OOB)}
s_and_b64 {sp(H_T2)}, {sp(H_T2)}, {sp(H_ACT)}
s_cbranch_scc1 L_rareA
L_perm:
ds_permute_b32 v{C0}, v{DST}, v{E0}
ds_permute_b32 v{C0+1}, v{DST}, v{E1}
ds_permute_b32 v{C0+2}, v{DST}, v{C01}
s_cmp_gt_u32 s{H_CNT}, s{S_K}
s_cbranch_scc1 L_ovf
L_tdpp:
v_mov_b32_dpp v{TV}, v{TV} quad_perm:[0,0,0,0] row_mask:0x8 bank_mask:0xf
L_Adone:
{hs(4)}
s_and_b32 s{H_CTL}, s{H_CTL}, 2
s_cmp_lt_u32 s{H_STEP}, 2
s_cbranch_scc1 L_now
L_wiss:
""")
if not XP & 1: w_issue()
A(f"""
L_now:
{hs(5)}
s_cmp_lg_u32 s{H_BSEL}, 0
s_cbranch_scc1 L_B2
L_estep:
{hs(6)}
v_xor_b32 v{VFL}, 4, v{VFL}
s_mov_b32 s{H_PW}, s{H_PN}
s_sub_u32 s{H_PN}, s{H_PSUM}, s{H_PN}
s_add_u32 s{H_STEP}, s{H_STEP}, 1
s_cmp_lt_u32 s{H_STEP}, 4
s_cbranch_scc1 L_w12
s_waitcnt {"" if XP & 2 else "vmcnt(5) "}lgkmcnt(0)
L_bar:
{hs(7)}
{hacc()}
s_barrier
s_cmp_lg_u32 s{H_J}, {27+DSK}
s_cbranch_scc1 L_step
s_waitcnt vmcnt(0)
{hout()}
L_end:
s_endpgm
L_w12:
s_waitcnt lgkmcnt(0)
s_cmp_eq_u32 s{H_STEP}, 1
s_cbranch_scc1 L_bar
s_waitcnt vmcnt(12)
s_branch L_bar
L_event:
s_cmp_lg_u32 s{H_J}, {DSK-2}
s_cbranch_scc1 L_ev1
s_or_b32 s{H_CTL}, s{H_CTL}, 2
s_mov_b32 s{H_EV}, {DSK}
s_branch L_adv2
L_ev1:
s_or_b32 s{H_CTL}, s{H_CTL}, 1
s_cmp_lg_u32 s{H_J}, {DSK}
s_cbranch_scc1 L_ev2
s_or_b64 {sp(H_ACT)}, {sp(H_ACT)}, {sp(H_G2)}
s_mov_b32 s{H_HI}, s{H_HIF}
s_mov_b32 s{H_EV}, 25
s_branch L_adv2
L_ev2:
s_cmp_lg_u32 s{H_J}, 25
s_cbranch_scc1 L_ev3
s_mov_b64 {sp(H_ACT)}, {sp(H_G2)}
s_mov_b32 s{H_TAP}, 0
s_mov_b32 s{H_WS}, 0
v_add_f32 v{BY}, 0xc0a00000, v{BY}
v_and_b32 v{VTW}, 0x100, v{VTW}
v_or_b32 v{VTW}, v{VTW}, v{VTWT}
s_mov_b32 s{H_EV}, {25+DSK}
s_branch L_adv2
L_ev3:
s_mov_b64 {sp(H_ACT)}, 0
s_mov_b32 s{H_EV}, -1
s_branch L_adv2
L_rareA:
v_sub_f32 v{T0}, 1.0, v{WY}
v_sub_f32 v{T1}, 1.0, v{WX}
v_cvt_pk_bf16_f32 v{T0}, v{T0}, v{T1}
v_and_b32 v{T1}, 0xffff0000, v{T0}
v_lshlrev_b32 v{T0}, 16, v{T0}
v_mul_f32 v{C01}, v{T0}, v{T1}
v_mul_f32 v{T2}, v{WY}, v{WX}
v_mul_f32 v{C23}, v{T0}, v{WX}
v_mul_f32 v{T3}, v{WY}, v{T1}
v_cvt_pk_bf16_f32 v{C01}, v{C01}, v{T2}
v_cvt_pk_bf16_f32 v{C23}, v{C23}, v{T3}
s_mov_b32 s{H_MODE}, 2
ds_permute_b32 v{C0+3}, v{DST}, v{C23}
s_and_b64 {sp(H_T2)}, {sp(H_OOB)}, {sp(H_ACT)}
s_cbranch_scc0 L_perm
s_mov_b32 s{H_MODE}, 3
v_mul_u32_u24 v{E0}, 192, v{IX}
v_mul_u32_u24 v{E1}, 192, v{IX1}
v_mul_u32_u24 v{T0}, 43008, v{IY}
v_mul_u32_u24 v{T1}, 43008, v{IY1}
v_add_u32 v{E0}, v{E0}, v{T0}
v_add_u32 v{E1}, v{E1}, v{T1}
s_branch L_perm
L_ovf:
s_sub_u32 s{H_S1}, s{H_CNT}, 1
s_cmp_eq_u32 s{S_K}, 32
s_cselect_b32 s{H_S2}, 5, 4
s_lshr_b32 s{H_S1}, s{H_S1}, s{H_S2}
v_mov_b32 v{T0}, s{H_S1}
ds_write_b8 v{VFL}, v{T0}
v_cmp_le_u32 vcc, s{S_K}, v{RANK}
v_mov_b32 v{T0}, s{H_CTL}
s_and_b64 vcc, vcc, {sp(H_EXC)}
v_cndmask_b32 v{TV}, v{TV}, v{T0}, vcc
s_branch L_tdpp
L_rep:
s_cmp_lg_u32 s{H_RND}, 0
s_cbranch_scc1 L_rep1
s_and_b32 s{H_REM}, s{H_FL}, 0xff
s_bfe_u32 s{H_S1}, s{H_FL}, 0x80008
s_max_u32 s{H_REM}, s{H_REM}, s{H_S1}
s_bfe_u32 s{H_S1}, s{H_FL}, 0x80010
s_max_u32 s{H_REM}, s{H_REM}, s{H_S1}
s_lshr_b32 s{H_S1}, s{H_FL}, 24
s_max_u32 s{H_REM}, s{H_REM}, s{H_S1}
v_writelane_b32 v{C0}, 0, 63
v_writelane_b32 v{C0+1}, 0, 63
v_writelane_b32 v{C0+2}, 0, 63
v_writelane_b32 v{C0+3}, 0, 63
L_rep1:
s_cmp_lg_u32 s{H_REM}, 0
s_cselect_b32 s{H_RND}, 1, 0
s_cbranch_scc0 L_adv
s_sub_u32 s{H_REM}, s{H_REM}, 1
s_sub_i32 s{H_CNT}, s{H_CNT}, s{S_K}
s_max_i32 s{H_CNT}, s{H_CNT}, 0
v_subrev_u32 v{RANK}, s{S_K}, v{RANK}
s_or_b32 s{H_S1}, s{H_PN}, s{H_CTL}
""")
for it in range(2):
    for c in range(4):
        A(f"v_mov_b32_dpp v{C0+c}, v{C0+c} quad_perm:[1,2,3,0] row_mask:0xf bank_mask:0xf")
    if it == 0: A(f"s_cmp_eq_u32 s{S_K}, 16\ns_cbranch_scc1 L_rep2")
A(f"""
L_rep2:
v_cmp_gt_u32 vcc, s{S_K}, v{RANK}
v_and_b32 v{T0}, 63, v{RANK}
v_mad_u32_u24 v{T1}, v{T0}, v{V192}, s{H_S1}
v_lshlrev_b32 v{T2}, 2, v{T0}
v_and_or_b32 v{T1}, v{T2}, 48, v{T1}
v_mov_b32 v{TV}, s{H_CTL}
s_and_b64 vcc, vcc, {sp(H_EXC)}
v_cndmask_b32 v{TV}, v{TV}, v{T1}, vcc
s_waitcnt lgkmcnt(0)
v_mov_b32_dpp v{TV}, v{TV} quad_perm:[0,0,0,0] row_mask:0x8 bank_mask:0xf
s_cmp_lg_u32 s{H_STEP}, 1
s_cbranch_scc1 L_wiss
s_waitcnt vmcnt(0)
s_sub_u32 s{H_WL}, s{H_WL}, {WSLOT}
s_mov_b32 s{H_RING}, 1
""")
w_issue()
A(f"""
s_waitcnt vmcnt(0)
s_branch L_now
""")
SEQ = [(u, b) for u in range(3) for b in range(2)]
def b1_group(c, four):
    a = AR[c]; cb = CB[c]
    A(f"""
v_xor_b32_dpp v{a}, v{C0}, v{CC16} {qp(c)}
v_xor_b32_dpp v{a+1}, v{C0+1}, v{CC16} {qp(c)}
v_mov_b32_dpp v{cb+3}, v{C0+2} {qp(c)}
""")
    if four: A(f"v_mov_b32_dpp v{cb+7}, v{C0+3} {qp(c)}")
    for k, (u, b) in enumerate(SEQ):
        g = GR[c] + 4 * k
        A(f"ds_read_b64_tr_b16 v[{g}:{g+1}], v{a} offset:{64*u+8*b}")
        A(f"ds_read_b64_tr_b16 v[{g+2}:{g+3}], v{a+1} offset:{64*u+8*b}")
        if k < 4: A(f"v_perm_b32 v{cb+k}, v{cb+3}, v{cb+3}, v{SEL[k]}")
    if four:
        A(f"""
v_sub_u32 v{T0}, v{a+1}, v{a}
v_mov_b32 v{T1}, s{S_ST}
v_cmp_lt_i32 vcc, 0x400, v{T0}
v_perm_b32 v{cb+4}, v{cb+7}, v{cb+7}, v{SEL[0]}
v_perm_b32 v{cb+5}, v{cb+7}, v{cb+7}, v{SEL[1]}
v_cndmask_b32 v{T0}, 0, v{T1}, vcc
v_sub_u32 v{a+2}, v{a+1}, v{T0}
v_add_u32 v{a+3}, v{a}, v{T0}
v_perm_b32 v{cb+6}, v{cb+7}, v{cb+7}, v{SEL[2]}
v_perm_b32 v{cb+7}, v{cb+7}, v{cb+7}, v{SEL[3]}
""")
        for k, (u, b) in enumerate(SEQ):
            g = HR[c] + 4 * k
            A(f"ds_read_b64_tr_b16 v[{g}:{g+1}], v{a+2} offset:{64*u+8*b}")
            A(f"ds_read_b64_tr_b16 v[{g+2}:{g+3}], v{a+3} offset:{64*u+8*b}")
A(f"""
L_B1:
s_min_u32 s{H_NG}, s{H_CNT}, s{S_K}
v_add_u32 v{PWC}, s{H_PW}, v{PWS}
s_cmp_gt_u32 s{H_MODE}, 1
s_cbranch_scc1 L_B1b
""")
b1_group(0, False)
A(f"""
s_mov_b32 s{H_BSEL}, 1
s_cmp_le_u32 s{H_NG}, 16
s_cbranch_scc1 L_B1e
""")
b1_group(1, False)
A(f"""
s_mov_b32 s{H_BSEL}, 2
L_B1e:
s_waitcnt lgkmcnt(12)
s_branch L_dec
L_B1b:
s_cmp_eq_u32 s{H_MODE}, 3
s_cbranch_scc1 L_B3
""")
b1_group(0, True)
A(f"""
s_mov_b32 s{H_BSEL}, 3
s_cmp_le_u32 s{H_NG}, 16
s_cbranch_scc1 L_B1e
""")
b1_group(1, True)
A(f"""
s_mov_b32 s{H_BSEL}, 4
s_branch L_B1e
""")
a = AR[0]; cb = CB[0]; g0 = GR[0]; ac = GR[1]
A(f"""
L_B3:
v_mov_b32 v{T3}, v{VBP}
L_B3l:
ds_bpermute_b32 v{a}, v{T3}, v{C0}
ds_bpermute_b32 v{a+1}, v{T3}, v{C0+1}
ds_bpermute_b32 v{cb+4}, v{T3}, v{C0+2}
ds_bpermute_b32 v{cb+5}, v{T3}, v{C0+3}
v_add_u32 v{T3}, 4, v{T3}
s_waitcnt lgkmcnt(0)
v_sub_u32 v{a+2}, v{a+1}, v{a}
v_and_b32 v{a+2}, 0xff, v{a+2}
v_add_u32 v{a}, v{a}, v{HG16}
v_add_u32 v{a+1}, v{a+1}, v{HG16}
v_sub_u32 v{a+3}, v{a+1}, v{a+2}
v_add_u32 v{a+2}, v{a}, v{a+2}
v_lshlrev_b32 v{cb}, 16, v{cb+4}
v_and_b32 v{cb+1}, 0xffff0000, v{cb+4}
v_lshlrev_b32 v{cb+2}, 16, v{cb+5}
v_and_b32 v{cb+3}, 0xffff0000, v{cb+5}
""")
for u in range(3):
    for k in range(4):
        A(f"buffer_load_dwordx4 v[{HR[0]+16*u+4*k}:{HR[0]+16*u+4*k+3}], v{a+k}, s[{SX}:{SX+3}], 0 offen offset:{64*u}")
for u in range(3):
    for k in range(4):
        A(f"s_waitcnt vmcnt({11-4*u-k})")
        for d in range(4):
            g = HR[0] + 16 * u + 4 * k + d
            lo, hi = ac + 2 * d, ac + 2 * d + 1
            op = "v_mul_f32" if k == 0 else "v_fmac_f32"
            A(f"""
v_lshlrev_b32 v{cb+6}, 16, v{g}
v_and_b32 v{cb+7}, 0xffff0000, v{g}
{op} v{lo}, v{cb+k}, v{cb+6}
{op} v{hi}, v{cb+k}, v{cb+7}
""")
    for d in range(4):
        A(f"v_cvt_pk_bf16_f32 v{g0+4*u+d}, v{ac+2*d}, v{ac+2*d+1}")
    A(f"ds_write_b128 v{PWC}, v[{g0+4*u}:{g0+4*u+3}] offset:{64*u}")
A(f"""
v_add_u32 v{PWC}, 3072, v{PWC}
s_sub_i32 s{H_NG}, s{H_NG}, 16
s_cmp_gt_i32 s{H_NG}, 0
s_cbranch_scc1 L_B3l
s_branch L_dec
""")
def b2(ng, four):
    A("s_setprio 3")
    for c in range(ng):
        for k in range(6):
            g = GR[c] + 4 * k
            A(f"v_mfma_f32_16x16x32_bf16 v[{g}:{g+3}], v[{g}:{g+3}], v[{CB[c]}:{CB[c]+3}], 0")
    if four:
        for c in range(ng):
            for k in range(6):
                g = GR[c] + 4 * k; h = HR[c] + 4 * k
                A(f"v_mfma_f32_16x16x32_bf16 v[{g}:{g+3}], v[{h}:{h+3}], v[{CB[c]+4}:{CB[c]+7}], v[{g}:{g+3}]")
    A("s_setprio 0")
    for c in range(ng):
        for u in range(3):
            g = GR[c] + 8 * u
            for d in range(4):
                A(f"v_cvt_pk_bf16_f32 v{g+d}, v{g+2*d}, v{g+2*d+1}")
            A(f"ds_write_b128 v{PWC}, v[{g}:{g+3}] offset:{3072*c+64*u}")
    A("s_branch L_estep")
A(f"""
L_B2:
s_cmp_eq_u32 s{H_BSEL}, 2
s_cbranch_scc1 L_B2_2
s_cmp_eq_u32 s{H_BSEL}, 3
s_cbranch_scc1 L_B2_3
s_cmp_eq_u32 s{H_BSEL}, 4
s_cbranch_scc1 L_B2_4
""")
b2(1, False)
E("L_B2_2:"); b2(2, False)
E("L_B2_3:"); b2(1, True)
E("L_B2_4:"); b2(2, True)

L = hz.fix(L)
T = HDR + L + ['.section .rodata,"a"', ".p2align 6", ".amdhsa_kernel %s_kernel" % NAME,
               "  .amdhsa_next_free_vgpr 256", "  .amdhsa_next_free_sgpr 102", "  .amdhsa_accum_offset 256",
               "  .amdhsa_group_segment_fixed_size 0", "  .amdhsa_kernarg_size 48", "  .amdhsa_user_sgpr_count 2",
               "  .amdhsa_user_sgpr_kernarg_segment_ptr 1", "  .amdhsa_system_sgpr_workgroup_id_x 1",
               "  .amdhsa_float_denorm_mode_32 3", ".end_amdhsa_kernel"]
open(OUT, "w").write("\n".join(T) + "\n")
for n in final: print(n, len(final[n]), dict(Counter(i.k for i in final[n])))
```

```python
import sys
from sched import *

NAME = "standalone__deformable_dcnv1__vision"
DIAG = "--diag" in sys.argv
OUT = [a for a in sys.argv[1:] if not a.startswith("--")][0]

XROWS = 18
XB = 0
WB = XROWS * 4096
WSLOT = 18816
OFFB = WB + 3 * WSLOT
INFB = OFFB + 21 * 1024
FLB = INFB + 8192
LDS_TOTAL = FLB + 64
assert FLB % 32 == 0 and LDS_TOTAL <= 163840

ACC = 176
AF = 104
BF = 56
TT = 32
CB = 24
INF = 20
A0, A1, A2, A3 = 16, 17, 18, 19
VFL = 15
WBs = [0, 1, 2]
BAD, BAD3, N6, G16, CC16 = 3, 4, 5, 6, 7
SEL = [8, 9, 10, 11]
VINFA, VFLA = 12, 13
VT = 14
def acc(slot, i): return ACC + (slot * 6 + i) * 4 if slot < 3 else ACC + 72 + i * 4
def af(u, i): return AF + (u * 6 + i) * 4
def bf(slot, u): return BF + slot * 12 + u * 4

SX, SO, SW, SD = 4, 8, 12, 16
S_WID, S_W, S_R0, S_C0, S_H, S_A0, S_B0, S_MT, S_ML = 20, 21, 22, 23, 24, 25, 26, 27, 28
S_KJ, S_ROW, S_ROW3, S_RING, S_WD, S_T, S_FN, S_F1, S_C, S_COMB, S_PAR, S_192, S_FFF = range(30, 43)
S_T2 = 43

L = []
def E(x): L.append(x)
def EB(block):
    for i in block: E("    " + i.t)

ORDER = [0, 3, 1, 2]
def main_mfmas():
    m = []
    for slot in ORDER:
        for u in range(3):
            for i in range(6 if slot < 3 else 2):
                m.append(mfma(acc(slot, i), af(u, i), bf(slot, u), acc(slot, i)))
    return m
NPOS = 60
FREE = {0: 17, 3: 23, 1: 41, 2: -1}
SEGS = [(0, 15, 2), (15, 30, 0), (30, 45, 3), (45, 60, 1)]
BARPOS = 30

def w_reads():
    res = []
    for q in range(18):
        u, i = divmod(q, 6)
        tq = 42 + int(q * 1.45)
        for sec in range(2):
            res.append((tq + (sec if q % 2 else 0), (af(u, i) + 2 * sec, WBs[i // 2], u * 6272 + sec * 768 + 32 * (i % 2))))
    return res
def w_stream(lo, hi):
    s = []
    allr = w_reads()
    tail = [(t - 60, x) for t, x in allr if t >= 60]
    head = [(t, x) for t, x in allr if t < 60]
    for t, (d, b, off) in tail + head:
        if lo <= t < hi:
            s.append(tr(d, b, off, after=t))
    is_tail = [t for t, _ in tail if lo <= t < hi]
    if is_tail:
        s[len(is_tail) - 1].G("wtail")
    return s

def prep_fast(slot):
    ad = BAD3 if slot == 3 else BAD
    base = 0 if slot == 3 else slot * 16384
    s = [rd128(bf(slot, u), ad, base + 64 * u, after=FREE[slot]) for u in range(3)]
    if slot != 2:
        for x in s: x.N("newaddr")
    s[-1].G("addr_used", "info_used")
    return [s]

def dppq(c): return "quad_perm:[%d,%d,%d,%d] row_mask:0xf bank_mask:0xf" % (c, c, c, c)

def prep_interp(slot, four):
    fr = FREE[slot]
    ld, mm, cv = [], [], []
    ld.append(V("v_xor_b32_dpp v%d, v%d, v%d %s" % (A0, INF, CC16, dppq(slot)), rd=[INF, CC16], wr=[A0], dpp=True))
    ld.append(V("v_xor_b32_dpp v%d, v%d, v%d %s" % (A1, INF + 1, CC16, dppq(slot)), rd=[INF + 1, CC16], wr=[A1], dpp=True))
    ld.append(V("v_mov_b32_dpp v%d, v%d %s" % (CB + 3, INF + 2, dppq(slot)), rd=[INF + 2], wr=[CB + 3], dpp=True))
    if four:
        ld.append(V("v_mov_b32_dpp v%d, v%d %s" % (CB + 7, INF + 3, dppq(slot)), rd=[INF + 3], wr=[CB + 7], dpp=True))
    ld[-1].G("addr_used", "info_used", "cb")
    def gset(u, b): return bf(slot, u) if b == 0 else TT + 4 * u
    seq = [(u, 1) for u in range(3)] + [(u, 0) for u in range(3)]
    for (u, b) in seq:
        g = gset(u, b)
        a = fr if b == 0 else None
        ld.append(tr(g, A0, 64 * u + 8 * b, after=a))
        ld.append(tr(g + 2, A1, 64 * u + 8 * b, after=a).G(("g", u, b)))
    pm = []
    for d in range(4):
        pm.append(V("v_perm_b32 v%d, v%d, v%d, v%d" % (CB + d, CB + 3, CB + 3, SEL[d]), rd=[CB + 3, SEL[d]], wr=[CB + d]).N("cb"))
    pm[-1].G("cbA")
    if four:
        for d in range(4):
            pm.append(V("v_perm_b32 v%d, v%d, v%d, v%d" % (CB + 4 + d, CB + 7, CB + 7, SEL[d]), rd=[CB + 7, SEL[d]], wr=[CB + 4 + d]))
        pm[-1].G("cbB")
        pm.append(V("v_bfi_b32 v%d, s%d, v%d, v%d" % (A2, S_FFF, A1, A0), rd=[A0, A1], wr=[A2]))
        pm.append(V("v_bfi_b32 v%d, s%d, v%d, v%d" % (A3, S_FFF, A0, A1), rd=[A0, A1], wr=[A3]).G("a23"))
        for k, (u, b) in enumerate(seq):
            g = TT + 12 + 4 * (k % 3)
            x = tr(g, A2, 64 * u + 8 * b).N("a23")
            if k >= 3: x.N(("mB", k - 3))
            ld.append(x)
            ld.append(tr(g + 2, A3, 64 * u + 8 * b).G(("h", k)))
    if not four:
        for (u, b) in seq:
            g = gset(u, b)
            mm.append(mfma(g, g, CB).N(("g", u, b), "cbA").G(("m", u, b)))
    else:
        for (u, b) in seq:
            g = gset(u, b)
            mm.append(mfma(g, g, CB).N(("g", u, b), "cbA"))
        for k, (u, b) in enumerate(seq):
            g = gset(u, b)
            mm.append(mfma(g, TT + 12 + 4 * (k % 3), CB + 4, g).N(("h", k), "cbB").G(("m", u, b), ("mB", k)))
    for u in range(3):
        B = bf(slot, u); T = TT + 4 * u
        cv.append(V("v_cvt_pk_bf16_f32 v%d, v%d, v%d" % (B, B, B + 1), rd=[B, B + 1], wr=[B]).N(("m", u, 0)))
        cv.append(V("v_cvt_pk_bf16_f32 v%d, v%d, v%d" % (B + 1, B + 2, B + 3), rd=[B + 2, B + 3], wr=[B + 1]))
        cv.append(V("v_cvt_pk_bf16_f32 v%d, v%d, v%d" % (B + 2, T, T + 1), rd=[T, T + 1], wr=[B + 2]).N(("m", u, 1)))
        cv.append(V("v_cvt_pk_bf16_f32 v%d, v%d, v%d" % (B + 3, T + 2, T + 3), rd=[T + 2, T + 3], wr=[B + 3]))
    return [ld, mm, cv, pm]

def fallback_code(slot):
    pre, c = [], []
    pre.append(V("v_subrev_u32 v%d, 6, v%d" % (TT, N6), rd=[N6], wr=[TT]))
    pre.append(V("v_and_b32 v%d, 3, v%d" % (TT + 1, TT), rd=[TT], wr=[TT + 1]))
    pre.append(V("v_and_b32 v%d, 12, v%d" % (TT, TT), rd=[TT], wr=[TT]))
    pre.append(V("v_lshlrev_b32 v%d, 2, v%d" % (TT, TT), rd=[TT], wr=[TT]))
    pre.append(V("v_lshl_or_b32 v%d, v%d, 6, v%d" % (TT, TT + 1, TT), rd=[TT, TT + 1], wr=[TT]))
    for k, d in enumerate([A0, A1, CB + 4, CB + 5]):
        pre.append(I("ds_bpermute_b32 v%d, v%d, v%d offset:%d" % (d, TT, INF + k, 4 * slot), "L", rd=[TT, INF + k], wr=[d], ld=True))
    pre[-1].G("addr_used", "info_used")
    c.append(V("v_sub_u32 v%d, v%d, v%d" % (A2, A1, A0), rd=[A0, A1], wr=[A2]))
    c.append(V("v_and_b32 v%d, 0xff, v%d" % (A2, A2), rd=[A2], wr=[A2]))
    c.append(V("v_add_u32 v%d, v%d, v%d" % (A0, A0, G16), rd=[A0, G16], wr=[A0]))
    c.append(V("v_add_u32 v%d, v%d, v%d" % (A1, A1, G16), rd=[A1, G16], wr=[A1]))
    c.append(V("v_sub_u32 v%d, v%d, v%d" % (A3, A1, A2), rd=[A1, A2], wr=[A3]))
    c.append(V("v_add_u32 v%d, v%d, v%d" % (A2, A0, A2), rd=[A0, A2], wr=[A2]))
    c.append(V("v_lshlrev_b32 v%d, 16, v%d" % (CB, CB + 4), rd=[CB + 4], wr=[CB]))
    c.append(V("v_and_b32 v%d, 0xffff0000, v%d" % (CB + 1, CB + 4), rd=[CB + 4], wr=[CB + 1]))
    c.append(V("v_lshlrev_b32 v%d, 16, v%d" % (CB + 2, CB + 5), rd=[CB + 5], wr=[CB + 2]))
    c.append(V("v_and_b32 v%d, 0xffff0000, v%d" % (CB + 3, CB + 5), rd=[CB + 5], wr=[CB + 3]))
    for u in range(3):
        for k in range(4):
            c.append(I("buffer_load_dwordx4 %s, v%d, s[%d:%d], 0 offen offset:%d" % (vr(TT + 4 * k, 4), A0 + k, SX, SX + 3, 64 * u),
                       "X", rd=[A0 + k], wr=R(TT + 4 * k, 4)))
        for k in range(4):
            c.append(S("s_waitcnt vmcnt(%d)" % (3 - k)))
            for d in range(4):
                g = TT + 4 * k + d
                lo, hi = TT + 16 + 2 * d, TT + 17 + 2 * d
                c.append(V("v_lshlrev_b32 v%d, 16, v%d" % (CB + 6, g), rd=[g], wr=[CB + 6]))
                c.append(V("v_and_b32 v%d, 0xffff0000, v%d" % (CB + 7, g), rd=[g], wr=[CB + 7]))
                if k == 0:
                    c.append(V("v_mul_f32 v%d, v%d, v%d" % (lo, CB, CB + 6), rd=[CB, CB + 6], wr=[lo]))
                    c.append(V("v_mul_f32 v%d, v%d, v%d" % (hi, CB, CB + 7), rd=[CB, CB + 7], wr=[hi]))
                else:
                    c.append(V("v_fmac_f32 v%d, v%d, v%d" % (lo, CB + k, CB + 6), rd=[CB + k, CB + 6, lo], wr=[lo]))
                    c.append(V("v_fmac_f32 v%d, v%d, v%d" % (hi, CB + k, CB + 7), rd=[CB + k, CB + 7, hi], wr=[hi]))
        for d in range(4):
            lo, hi = TT + 16 + 2 * d, TT + 17 + 2 * d
            B = bf(slot, u) + d
            c.append(V("v_cvt_pk_bf16_f32 v%d, v%d, v%d" % (B, lo, hi), rd=[lo, hi], wr=[B]))
    return pre, c

def addr_calc():
    return [
        V("v_add_u32 v%d, s%d, v%d" % (VT, S_KJ, N6), rd=[N6], wr=[VT]).N("tapadv"),
        V("v_lshlrev_b32 v%d, 3, v%d" % (BAD3, VT), rd=[VT], wr=[BAD3]).N("addr_used"),
        V("v_bitop3_b32 v%d, v%d, 32, v%d bitop3:0x6a" % (BAD3, BAD3, G16), rd=[BAD3, G16], wr=[BAD3]),
        V("v_mad_u32_u24 v%d, v%d, s%d, v%d" % (VT, VT, S_192, BAD3), rd=[VT, BAD3], wr=[VT]),
        V("v_add_u32 v%d, s%d, v%d" % (BAD, S_ROW, VT), rd=[VT], wr=[BAD]),
        V("v_add_u32 v%d, s%d, v%d" % (BAD3, S_ROW3, VT), rd=[VT], wr=[BAD3]).G("newaddr"),
    ]
def tap_adv():
    return [
        S("s_add_u32 s%d, s%d, 1" % (S_KJ, S_KJ)),
        S("s_cmp_eq_u32 s%d, 5" % S_KJ),
        S("s_cselect_b32 s%d, 0x1000, 0" % S_T),
        S("s_cselect_b32 s%d, 0, s%d" % (S_KJ, S_KJ)),
        S("s_add_u32 s%d, s%d, s%d" % (S_ROW, S_ROW, S_T)),
        S("s_add_u32 s%d, s%d, s%d" % (S_ROW3, S_ROW3, S_T)).G("tapadv"),
        S("s_add_u32 s%d, s%d, 1" % (S_RING, S_RING)),
        S("s_cmp_eq_u32 s%d, 3" % S_RING),
        S("s_cselect_b32 s%d, 0x%x, 0x%x" % (S_WD, 0, 0)),
        S("s_cselect_b32 s%d, 0, s%d" % (S_RING, S_RING)).G("wd"),
    ]
S_WDM, S_WDP = 44, 45
def salu_seg0():
    s = tap_adv()
    s[8].t = "s_cselect_b32 s%d, s%d, s%d" % (S_WD, S_WDM, S_WDP)
    return s
def wbase_upd():
    s = [V("v_add_u32 v%d, s%d, v%d" % (w, S_WD, w), rd=[w], wr=[w]) for w in WBs]
    s[0].N("wd", "wtail")
    return s
def info_read():
    return [V("v_add_u32 v%d, s%d, v%d" % (VFL, S_PAR, VINFA), rd=[VINFA], wr=[VFL]).N("info_used"),
            rd128(INF, VFL, 0)]
def bar_stream(general):
    s = [S("s_barrier", after=BARPOS - 1, rd=(R(INF, 4) if general else [])).G("bar")]
    return s
def flag_read():
    return [rd32(VFL, VFLA, 0).N("bar"),
            V("v_xor_b32 v%d, 16, v%d" % (VFLA, VFLA), rd=[VFLA], wr=[VFLA]),
            V("v_readfirstlane_b32 s%d, v%d" % (S_FN, VFL), rd=[VFL]).G("fn")]
def flag_upd(after):
    return [S("s_and_b32 s%d, s%d, 0x30" % (S_C, S_F1), after=after).N("fn"),
            S("s_xor_b32 s%d, s%d, 0x1000" % (S_PAR, S_PAR)),
            S("s_mov_b32 s%d, s%d" % (S_F1, S_FN)),
            S("s_or_b32 s%d, s%d, s%d" % (S_COMB, S_C, S_FN)),
            S("s_cmp_eq_u32 s%d, 0" % S_COMB).G("end")]

ALLLD = set(R(AF, 72) + R(BF, 48) + R(INF, 4) + [VFL])

def build_fast():
    m = main_mfmas()
    st = []
    p2 = prep_fast(2)[0]
    st.append(p2)
    st.append(w_stream(0, 60))
    st.append(salu_seg0() + bar_stream(False) + flag_upd(50))
    st.append(addr_calc() + wbase_upd())
    st.append(prep_fast(0)[0] + prep_fast(3)[0] + prep_fast(1)[0])
    st.append(flag_read())
    return schedule(m, st, 0, pend_hint=ALLLD)

def build_seg(k, mode, pro=False):
    lo, hi, slot = SEGS[k]
    m = [] if pro else main_mfmas()[lo:hi]
    st = []
    post = []
    if mode == 0: pr = prep_fast(slot)
    elif mode == 1: pr = prep_interp(slot, False)
    elif mode == 2: pr = prep_interp(slot, True)
    else:
        pre, post = fallback_code(slot); pr = [pre]
    pre_given = []
    if k != 0:
        for s in pr:
            for x in s: x.need.discard("newaddr")
    ws = w_stream(lo, hi)
    if pro:
        for s in pr + [ws]:
            for x in s: x.after = None
    st.append(pr[0])
    st.append(ws)
    st += pr[1:]
    if not pro:
        if k == 0:
            st.append(salu_seg0())
            st.append(info_read())
            st.append(addr_calc() + wbase_upd())
        if k == 2:
            st.append(bar_stream(True))
            fr = flag_read()
            st.append(fr)
        if k == 3:
            fu = flag_upd(None)
            fu[0].need.discard("fn")
            st.append(fu)
    cap = 2 if mode == 0 else 3
    b = schedule(m, st, lo, pend_hint=ALLLD, vec_cap=cap)
    return b + post

blocks = {}
blocks["FAST"] = build_fast()
for k in range(4):
    for mode in range(4):
        blocks["G%d_%d" % (k, mode)] = build_seg(k, mode)
for k in range(1, 4):
    for mode in range(4):
        blocks["P%d_%d" % (k, mode)] = build_seg(k, mode, pro=True)
preds = {}
G = lambda k: ["G%d_%d" % (k, m) for m in range(4)]
P = lambda k: ["P%d_%d" % (k, m) for m in range(4)]
for n in P(1): preds[n] = []
for k in (2, 3):
    for n in P(k): preds[n] = P(k - 1)
for n in ["FAST"] + G(0): preds[n] = P(3) + ["FAST"] + G(3)
for k in (1, 2, 3):
    for n in G(k): preds[n] = G(k - 1)
exits = {n: {} for n in blocks}
final = {}
for it in range(6):
    changed = False
    for n in blocks:
        ent = merge_states([exits[p] for p in preds[n]])
        b, ex = lgkm_pass(blocks[n], ent)
        final[n] = b
        mx = merge_states([exits[n], ex])
        if mx != exits[n]:
            exits[n] = mx; changed = True
    if not changed: break
assert not changed
hz = {}
for n in blocks:
    hz[n] = hazard_pass(final[n], prev=[final[p][-9:] for p in preds[n]])
EXIT_STATE = merge_states([exits["FAST"]] + [exits[n] for n in G(3)])

def stats(n):
    b = hz[n]
    from collections import Counter
    return n, len(b), dict(Counter(i.k for i in b))

E("; @launch grid=(256,1,1) block=(512,1,1) lds=%d" % LDS_TOTAL)
E('.amdgcn_target "amdgcn-amd-amdhsa--gfx950"')
E(".text")
E(".globl %s_kernel" % NAME)
E(".p2align 8")
E(".type %s_kernel,@function" % NAME)
E("%s_kernel:" % NAME)
def A(s):
    for line in s.strip("\n").split("\n"):
        E("    " + line.strip() if not line.strip().endswith(":") else line.strip())

def stamp(idx):
    if DIAG:
        A("s_memtime s[%d:%d]" % (80 + 2 * idx, 81 + 2 * idx))

stamp(0)
if DIAG: A("s_memrealtime s[90:91]")
A(f"""
s_load_dwordx8 s[64:71], s[0:1], 0
s_cmp_ge_u32 s2, 256
s_cbranch_scc1 L_end
s_and_b32 s3, s2, 7
s_lshl_b32 s3, s3, 5
s_lshr_b32 s29, s2, 3
s_add_u32 s3, s3, s29
s_cmp_ge_u32 s3, 252
s_cbranch_scc1 L_end
v_lshrrev_b32 v1, 6, v0
v_and_b32 v0, 63, v0
s_mul_i32 s29, s3, 3641
v_readfirstlane_b32 s{S_WID}, v1
s_lshr_b32 s29, s29, 16
s_lshl_b32 s{S_C0}, s29, 4
s_mul_i32 s29, s29, 18
s_sub_u32 s29, s3, s29
s_mul_i32 s{S_R0}, s29, 13
s_sub_u32 s{S_H}, 224, s{S_R0}
s_min_u32 s{S_H}, s{S_H}, 13
s_min_u32 s{S_MT}, s{S_R0}, 1
s_min_u32 s{S_ML}, s{S_C0}, 1
s_sub_i32 s{S_A0}, s{S_R0}, s{S_MT}
s_sub_i32 s{S_A0}, s{S_A0}, 2
s_sub_i32 s{S_B0}, s{S_C0}, s{S_ML}
s_sub_i32 s{S_B0}, s{S_B0}, 2
s_and_b32 s{S_W}, s{S_WID}, 3
s_mov_b32 s{SX+2}, 9633792
s_mov_b32 s{SX+3}, 0x00020000
s_mov_b32 s{SO+2}, 5017600
s_mov_b32 s{SO+3}, 0x00020000
s_mov_b32 s{SW+2}, 460800
s_mov_b32 s{SW+3}, 0x00020000
s_mov_b32 s{SD+2}, 9633792
s_mov_b32 s{SD+3}, 0x00020000
""")
for m in range(3):
    A(f"""
s_add_u32 s29, s{S_WID}, {8*m}
s_lshl_b32 s29, s29, 6
v_add_u32 v2, s29, v0
v_mul_u32_u24 v3, 5243, v2
v_lshrrev_b32 v3, 19, v3
v_mul_u32_u24 v4, 100, v3
v_sub_u32 v4, v2, v4
v_add_u32 v3, s{S_R0}, v3
v_min_u32 v3, 223, v3
v_mul_u32_u24 v3, 22400, v3
v_lshl_add_u32 v{10+m}, v4, 4, v3
""")
A(f"""
s_lshl_b32 s29, s{S_W}, 6
v_add_u32 v2, s29, v0
v_mul_u32_u24 v3, 171, v2
v_lshrrev_b32 v3, 11, v3
v_mul_u32_u24 v4, 12, v3
v_sub_u32 v4, v2, v4
v_add_u32 v3, s{S_B0}, v3
v_lshrrev_b32 v5, 1, v3
v_and_b32 v5, 2, v5
v_xor_b32 v4, v4, v5
v_max_i32 v3, 0, v3
v_min_i32 v3, 223, v3
v_mul_u32_u24 v3, 192, v3
v_lshl_add_u32 v13, v4, 4, v3
s_waitcnt lgkmcnt(0)
s_mov_b32 s{SX}, s64
s_and_b32 s{SX+1}, s65, 0xffff
s_mov_b32 s{SO}, s66
s_and_b32 s{SO+1}, s67, 0xffff
s_mov_b32 s{SW}, s68
s_and_b32 s{SW+1}, s69, 0xffff
s_mov_b32 s{SD}, s70
s_and_b32 s{SD+1}, s71, 0xffff
s_mul_i32 s46, s{S_C0}, 100
s_lshl_b32 s47, s{S_WID}, 10
s_add_u32 s47, s47, {OFFB}
s_mov_b32 m0, s47
s_add_u32 s47, s47, 8192
buffer_load_dwordx4 v10, s[{SO}:{SO+3}], s46 offen lds
s_mov_b32 m0, s47
s_add_u32 s47, s47, 8192
buffer_load_dwordx4 v11, s[{SO}:{SO+3}], s46 offen lds
s_cmp_ge_u32 s{S_WID}, 5
s_cbranch_scc1 L_no3rd
s_mov_b32 m0, s47
s_nop 0
buffer_load_dwordx4 v12, s[{SO}:{SO+3}], s46 offen lds
L_no3rd:
s_lshr_b32 s46, s{S_WID}, 2
s_lshl_b32 s47, s46, 12
s_lshl_b32 s48, s{S_W}, 10
s_add_u32 s47, s47, s48
s_add_i32 s46, s46, s{S_A0}
""")
for m in range(9):
    A(f"""
s_max_i32 s48, s46, 0
s_min_i32 s48, s48, 223
s_mul_i32 s48, s48, 43008
s_mov_b32 m0, s47
s_add_u32 s47, s47, 8192
buffer_load_dwordx4 v13, s[{SX}:{SX+3}], s48 offen lds
s_add_i32 s46, s46, 2
""")
A(f"""
s_cmp_ge_u32 s{S_WID}, 4
s_cbranch_scc1 L_helper
""")

A(f"""
s_setprio 3
v_lshrrev_b32 v20, 4, v0
v_and_b32 v21, 15, v0
v_bfe_u32 v22, v0, 2, 2
v_and_b32 v23, 3, v0
v_add_u32 v{N6}, 6, v21
v_lshlrev_b32 v{G16}, 4, v20
v_lshlrev_b32 v{CC16}, 4, v23
v_lshlrev_b32 v24, 4, v0
s_lshl_b32 s29, s{S_W}, 10
s_add_u32 s29, s29, {INFB}
v_add_u32 v{VINFA}, s29, v24
s_lshl_b32 s29, s{S_W}, 2
s_add_u32 s29, s29, {FLB}
v_mov_b32 v{VFLA}, s29
v_mul_u32_u24 v24, 1568, v20
v_mul_u32_u24 v25, 192, v22
v_lshlrev_b32 v26, 3, v23
v_add3_u32 v24, v24, v25, v26
v_add_u32 v24, {WB}, v24
s_cmp_eq_u32 s{S_W}, 3
s_cselect_b32 s46, 0, s{S_W}
s_lshl_b32 s47, s46, 6
v_add_u32 v{WBs[0]}, s47, v24
s_add_u32 s47, s47, 64
s_cmp_eq_u32 s47, 192
s_cselect_b32 s47, 0, s47
v_add_u32 v{WBs[1]}, s47, v24
s_add_u32 s47, s47, 64
s_cmp_eq_u32 s47, 192
s_cselect_b32 s47, 0, s47
v_add_u32 v{WBs[2]}, s47, v24
""")
A(f"""
v_and_b32 v25, 1, v22
v_lshrrev_b32 v26, 1, v22
v_mov_b32 v27, 0x0c0c0100
v_mov_b32 v28, 0x01000c0c
v_cmp_eq_u32 vcc, 1, v25
v_mov_b32 v29, 0x0c0c0302
v_mov_b32 v30, 0x03020c0c
v_cndmask_b32 v27, v27, v28, vcc
v_cndmask_b32 v29, v29, v30, vcc
v_cmp_eq_u32 s[46:47], v23, v20
v_cmp_eq_u32 s[48:49], 0, v26
v_mov_b32 v28, 0x0c0c0c0c
s_and_b64 s[50:51], s[46:47], s[48:49]
s_andn2_b64 s[52:53], s[46:47], s[48:49]
v_cndmask_b32 v{SEL[0]}, v28, v27, s[50:51]
v_cndmask_b32 v{SEL[1]}, v28, v27, s[52:53]
v_cndmask_b32 v{SEL[2]}, v28, v29, s[50:51]
v_cndmask_b32 v{SEL[3]}, v28, v29, s[52:53]
s_mov_b32 s{S_192}, 192
s_mov_b32 s{S_FFF}, 0xfff
s_mov_b32 s{S_WDM}, {(-2*WSLOT) & 0xffffffff}
s_mov_b32 s{S_WDP}, {WSLOT}
s_mov_b32 s{S_KJ}, 0
s_mov_b32 s{S_RING}, 0
s_sub_i32 s46, s{S_ML}, 6
s_mul_i32 s46, s46, 192
s_lshl_b32 s47, s{S_MT}, 12
s_add_i32 s46, s46, s47
s_add_i32 s{S_ROW3}, s46, {12*4096}
s_lshl_b32 s47, s{S_W}, 12
s_add_i32 s{S_ROW}, s46, s47
""")
for r in range(ACC, 256):
    A("v_mov_b32 v%d, 0" % r)
for x in addr_calc(): A(x.t)
A(f"""
s_cmp_ge_u32 s{S_WID}, 5
s_waitcnt vmcnt(9)
s_barrier
s_barrier
ds_read_b32 v{VFL}, v{VFLA}
ds_read_b32 v{VT}, v{VFLA} offset:16
ds_read_b128 {vr(INF,4)}, v{VINFA}
s_mov_b32 s{S_PAR}, 0x1000
s_waitcnt lgkmcnt(0)
v_readfirstlane_b32 s{S_T2}, v{VFL}
v_readfirstlane_b32 s{S_F1}, v{VT}
s_waitcnt vmcnt(0)
""")
stamp(1)
A("s_barrier")
stamp(2)
if DIAG: A("s_waitcnt lgkmcnt(0)")
def dispatch(prefix, k, sreg, slot, nxt):
    A(f"s_bfe_u32 s{S_T}, s{sreg}, 0x2000{2*slot}")
    A(f"s_cmp_lg_u32 s{S_T}, 0")
    A(f"s_cbranch_scc1 L_{prefix}{k}_d")
    EB(hz["%s%d_0" % (prefix, k)])
    E(f"L_{prefix}{k}_end:")
def slow_variants(prefix, k):
    E(f"L_{prefix}{k}_d:")
    A(f"s_cmp_eq_u32 s{S_T}, 2")
    A(f"s_cbranch_scc1 L_{prefix}{k}_2")
    A(f"s_cmp_eq_u32 s{S_T}, 3")
    A(f"s_cbranch_scc1 L_{prefix}{k}_3")
    for mode in (1, 2, 3):
        E(f"L_{prefix}{k}_{mode}:")
        EB(hz["%s%d_%d" % (prefix, k, mode)])
        A(f"s_branch L_{prefix}{k}_end")
for k in (1, 2, 3):
    dispatch("P", k, S_T2, SEGS[k][2], None)
A(f"""
s_and_b32 s{S_C}, s{S_T2}, 0x30
s_or_b32 s{S_COMB}, s{S_C}, s{S_F1}
s_cmp_lg_u32 s{S_COMB}, 0
s_cbranch_scc1 L_general
""")
E(".p2align 6")
E("L_fast:")
EB(hz["FAST"])
A("s_cbranch_scc1 L_fast")
E("L_general:")
A(f"""
s_bitcmp1_b32 s{S_COMB}, 8
s_cbranch_scc1 L_epi
""")
dispatch("G", 0, S_C, 2, None)
dispatch("G", 1, S_F1, 0, None)
dispatch("G", 2, S_F1, 3, None)
dispatch("G", 3, S_F1, 1, None)
A(f"""
s_cmp_eq_u32 s{S_COMB}, 0
s_cbranch_scc1 L_fast
s_branch L_general
""")
for k in range(4): slow_variants("G", k)
for k in (1, 2, 3): slow_variants("P", k)

E("L_epi:")
stamp(3)
A(f"""
s_waitcnt lgkmcnt(0)
v_subrev_u32 v20, 6, v{N6}
v_mul_u32_u24 v20, 192, v20
v_lshrrev_b32 v21, 1, v{G16}
v_and_b32 v21, 16, v21
v_lshlrev_b32 v22, 1, v{G16}
v_and_b32 v22, 32, v22
v_add3_u32 v20, v20, v21, v22
s_cmp_eq_u32 s{S_W}, 3
s_cselect_b32 s46, 0, s{S_W}
s_lshl_b32 s46, s46, 6
v_add_u32 v21, s46, v20
s_add_u32 s46, s46, 64
s_cmp_eq_u32 s46, 192
s_cselect_b32 s46, 0, s46
v_add_u32 v22, s46, v20
s_add_u32 s46, s46, 64
s_cmp_eq_u32 s46, 192
s_cselect_b32 s46, 0, s46
v_add_u32 v23, s46, v20
s_mul_i32 s47, s{S_C0}, 192
s_nop 4
""")
tcur = [0]
for slot in range(4):
    if slot < 3:
        A(f"s_add_u32 s46, s{S_W}, {4*slot}")
    else:
        A(f"s_cmp_eq_u32 s{S_W}, 3")
        A(f"s_cselect_b32 s46, 13, 12")
    A(f"""
s_cmp_ge_u32 s46, s{S_H}
s_cbranch_scc1 L_skip{slot}
s_add_u32 s46, s46, s{S_R0}
s_mul_i32 s46, s46, 43008
s_add_u32 s46, s46, s47
""")
    for p in range(3 if slot < 3 else 1):
        t = 32 + 4 * ((slot * 3 + p) % 10)
        e, o = acc(slot, 2 * p), acc(slot, 2 * p + 1)
        A(f"""
v_cvt_pk_bf16_f32 v{t}, v{e}, v{e+1}
v_cvt_pk_bf16_f32 v{t+1}, v{e+2}, v{e+3}
v_cvt_pk_bf16_f32 v{t+2}, v{o}, v{o+1}
v_cvt_pk_bf16_f32 v{t+3}, v{o+2}, v{o+3}
s_nop 1
v_permlane16_swap_b32 v{t}, v{t+2}
v_permlane16_swap_b32 v{t+1}, v{t+3}
buffer_store_dwordx4 v[{t}:{t+3}], v{21+p}, s[{SD}:{SD+3}], s46 offen
""")
    E(f"L_skip{slot}:")
if DIAG:
    A("s_waitcnt vmcnt(0)")
    stamp(4)
    A("s_memrealtime s[92:93]")
    A(f"""
s_load_dwordx2 s[72:73], s[0:1], 32
s_and_b32 s46, s2, 15
s_cmp_lg_u32 s46, 5
s_cbranch_scc1 L_nodbg
s_cmp_lg_u32 s{S_W}, 0
s_cbranch_scc1 L_nodbg
s_lshr_b32 s46, s2, 4
s_lshl_b32 s46, s46, 2
v_mov_b32 v20, s46
s_waitcnt lgkmcnt(0)
s_sub_u32 s46, s82, s80
s_sub_u32 s47, s92, s90
s_mul_i32 s47, s47, 100000
s_add_u32 s46, s46, s47
v_mov_b32 v21, s46
global_store_dword v20, v21, s[72:73]
L_nodbg:
""")
A("s_endpgm")

H_TAU, H_KJ, H_WS, H_WL, H_FLG, H_PAR, H_C223 = 30, 31, 32, 33, 34, 35, 36
H_VAL, H_SLOW, H_BOTH, H_OOB, H_TMP, H_M0, H_GM = 38, 40, 42, 44, 46, 48, 50
H_S1, H_S2, H_RING = 52, 53, 54
BY, BX, OFA, IFA, FLA, WV, D = 1, 2, 3, 4, 5, 6, 7
E("L_helper:")
A(f"""
v_lshlrev_b32 v{WV}, 4, v0
s_mul_i32 s{H_WS}, s{S_W}, {3*1536}
s_mul_i32 s{H_WL}, s{S_W}, {3*1568}
s_add_u32 s{H_WL}, s{H_WL}, {WB}
s_mov_b32 s{H_RING}, 0
""")
def w_issue():
    A("s_mov_b32 exec_hi, 0xffff")
    for m in range(3):
        A(f"""
s_add_u32 s{H_S1}, s{H_WL}, {m*1568}
s_mov_b32 m0, s{H_S1}
s_add_u32 s{H_S2}, s{H_WS}, {m*1536}
buffer_load_dwordx4 v{WV}, s[{SW}:{SW+3}], s{H_S2} offen lds
buffer_load_dwordx4 v{WV}, s[{SW}:{SW+3}], s{H_S2} offen offset:768 lds
""")
    A(f"""
s_mov_b32 exec_hi, -1
s_add_u32 s{H_WS}, s{H_WS}, 18432
s_cmp_ge_u32 s{H_WS}, 460800
s_cselect_b32 s{H_S1}, 460800, 0
s_sub_u32 s{H_WS}, s{H_WS}, s{H_S1}
s_add_u32 s{H_RING}, s{H_RING}, 1
s_cmp_eq_u32 s{H_RING}, 3
s_cselect_b32 s{H_S1}, {3*WSLOT}, 0
s_cselect_b32 s{H_RING}, 0, s{H_RING}
s_add_u32 s{H_WL}, s{H_WL}, {WSLOT}
s_sub_u32 s{H_WL}, s{H_WL}, s{H_S1}
""")
w_issue()
w_issue()
A(f"""
v_lshrrev_b32 v20, 4, v0
v_bfe_u32 v22, v0, 2, 2
v_and_b32 v23, 3, v0
v_lshl_add_u32 v20, v22, 2, v20
v_lshlrev_b32 v21, 2, v23
v_add_u32 v21, s{S_W}, v21
v_min_u32 v21, 12, v21
v_cmp_gt_u32 s[{H_VAL}:{H_VAL+1}], s{S_H}, v21
v_lshl_add_u32 v{OFA}, v21, 4, v20
v_mul_u32_u24 v{OFA}, 100, v{OFA}
v_add_u32 v{OFA}, {OFFB}, v{OFA}
v_add_u32 v21, s{S_R0}, v21
v_add_u32 v20, s{S_C0}, v20
v_cvt_f32_u32 v{BY}, v21
v_cvt_f32_u32 v{BX}, v20
v_add_f32 v{BY}, -2.0, v{BY}
v_add_f32 v{BX}, -2.0, v{BX}
s_lshl_b32 s29, s{S_W}, 10
s_add_u32 s29, s29, {INFB}
v_add_u32 v{IFA}, s29, v{WV}
s_lshl_b32 s29, s{S_W}, 2
s_add_u32 s29, s29, {FLB}
v_mov_b32 v{FLA}, s29
s_mov_b32 s{H_TAU}, 0
s_mov_b32 s{H_KJ}, 0
s_mov_b32 s{H_PAR}, 0
s_mov_b32 s{H_C223}, 0x435f435f
s_mov_b32 s{H_M0}, 0x11111111
s_mov_b32 s{H_M0+1}, 0x11111111
s_waitcnt vmcnt(21)
s_barrier
ds_read_b32 v{D}, v{OFA}
L_hloop:
s_cmp_lt_u32 s{H_TAU}, 2
s_cbranch_scc1 L_hnow
""")
w_issue()
A(f"""
L_hnow:
s_mov_b32 s{H_FLG}, 0
s_cmp_eq_u32 s{H_TAU}, 26
s_cselect_b32 s{H_FLG}, 0x100, 0
s_cmp_ge_u32 s{H_TAU}, 25
s_cbranch_scc1 L_hflags
s_waitcnt lgkmcnt(0)
v_lshlrev_b32 v10, 16, v{D}
v_and_b32 v11, 0xffff0000, v{D}
v_add_u32 v{OFA}, 4, v{OFA}
v_add_f32 v10, v{BY}, v10
v_add_f32 v11, v{BX}, v11
ds_read_b32 v{D}, v{OFA}
v_cvt_pk_bf16_f32 v12, v{BY}, v{BX}
v_cvt_pk_bf16_f32 v10, v10, v11
v_pk_max_i16 v12, v12, 0
v_pk_max_i16 v10, v10, 0
v_pk_min_i16 v12, v12, s{H_C223}
v_pk_min_i16 v10, v10, s{H_C223}
s_add_u32 s{H_KJ}, s{H_KJ}, 1
s_cmp_eq_u32 s{H_KJ}, 5
s_cselect_b32 s{H_S1}, 0xc0800000, 1.0
s_cselect_b32 s{H_S2}, 1.0, 0
s_cselect_b32 s{H_KJ}, 0, s{H_KJ}
v_cmp_ne_u32 vcc, v10, v12
v_add_f32 v{BX}, s{H_S1}, v{BX}
v_add_f32 v{BY}, s{H_S2}, v{BY}
s_and_b64 s[{H_SLOW}:{H_SLOW+1}], vcc, s[{H_VAL}:{H_VAL+1}]
s_cbranch_scc0 L_hflags
v_lshlrev_b32 v11, 16, v10
v_and_b32 v12, 0xffff0000, v10
v_floor_f32 v13, v11
v_floor_f32 v14, v12
v_ceil_f32 v15, v11
v_ceil_f32 v16, v12
v_sub_f32 v11, v11, v13
v_sub_f32 v12, v12, v14
v_cvt_i32_f32 v13, v13
v_cvt_i32_f32 v14, v14
v_cvt_i32_f32 v15, v15
v_cvt_i32_f32 v16, v16
v_sub_f32 v17, 1.0, v11
v_sub_f32 v18, 1.0, v12
v_cmp_ne_u32 vcc, v13, v15
v_cmp_ne_u32 s[{H_TMP}:{H_TMP+1}], v14, v16
v_cvt_pk_bf16_f32 v17, v17, v18
s_and_b64 vcc, vcc, s[{H_TMP}:{H_TMP+1}]
v_and_b32 v18, 0xffff0000, v17
v_lshlrev_b32 v17, 16, v17
s_and_b64 s[{H_BOTH}:{H_BOTH+1}], vcc, s[{H_VAL}:{H_VAL+1}]
v_mul_f32 v20, v17, v18
v_mul_f32 v21, v11, v12
v_mul_f32 v22, v17, v12
v_mul_f32 v23, v11, v18
v_add_f32 v24, v11, v12
v_cndmask_b32 v21, v24, v21, vcc
v_cndmask_b32 v22, 0, v22, vcc
v_cndmask_b32 v23, 0, v23, vcc
v_cvt_pk_bf16_f32 v30, v20, v21
v_cvt_pk_bf16_f32 v31, v22, v23
v_subrev_u32 v20, s{S_A0}, v13
v_subrev_u32 v21, s{S_B0}, v14
v_subrev_u32 v22, s{S_A0}, v15
v_subrev_u32 v23, s{S_B0}, v16
v_min_i32 v24, v20, v21
v_add_u32 v25, 3, v22
v_max_i32 v25, v25, v23
v_cmp_gt_i32 vcc, 0, v24
v_cmp_lt_i32 s[{H_TMP}:{H_TMP+1}], 20, v25
v_mul_u32_u24 v21, 192, v21
v_mul_u32_u24 v23, 192, v23
s_or_b64 vcc, vcc, s[{H_TMP}:{H_TMP+1}]
v_lshl_add_u32 v28, v20, 12, v21
v_lshl_add_u32 v29, v22, 12, v23
v_lshlrev_b32 v20, 3, v14
v_lshlrev_b32 v22, 3, v16
v_and_or_b32 v28, v20, 32, v28
v_and_or_b32 v29, v22, 32, v29
s_mov_b64 s[{H_GM}:{H_GM+1}], 0
s_and_b64 s[{H_OOB}:{H_OOB+1}], vcc, s[{H_VAL}:{H_VAL+1}]
""")
for c in range(4):
    A(f"""
s_lshl_b64 s[56:57], s[{H_M0}:{H_M0+1}], {c}
s_and_b64 s[{H_TMP}:{H_TMP+1}], s[56:57], s[{H_SLOW}:{H_SLOW+1}]
s_cselect_b32 s{H_S1}, {1 << (2*c)}, 0
s_and_b64 s[{H_TMP}:{H_TMP+1}], s[56:57], s[{H_BOTH}:{H_BOTH+1}]
s_cselect_b32 s{H_S1}, {2 << (2*c)}, s{H_S1}
s_and_b64 s[{H_TMP}:{H_TMP+1}], s[56:57], s[{H_OOB}:{H_OOB+1}]
s_cselect_b32 s{H_S1}, {3 << (2*c)}, s{H_S1}
s_cselect_b64 s[56:57], s[56:57], 0
s_or_b32 s{H_FLG}, s{H_FLG}, s{H_S1}
s_or_b64 s[{H_GM}:{H_GM+1}], s[{H_GM}:{H_GM+1}], s[56:57]
""")
A(f"""
s_cbranch_scc0 L_hnog
v_mul_u32_u24 v14, 192, v14
v_mul_u32_u24 v16, 192, v16
v_mul_u32_u24 v13, 43008, v13
v_mul_u32_u24 v15, 43008, v15
v_add_u32 v13, v13, v14
v_add_u32 v15, v15, v16
v_cndmask_b32 v28, v28, v13, s[{H_GM}:{H_GM+1}]
v_cndmask_b32 v29, v29, v15, s[{H_GM}:{H_GM+1}]
L_hnog:
v_add_u32 v20, s{H_PAR}, v{IFA}
ds_write_b128 v20, v[28:31]
L_hflags:
v_mov_b32 v21, s{H_FLG}
ds_write_b32 v{FLA}, v21
v_xor_b32 v{FLA}, 16, v{FLA}
s_xor_b32 s{H_PAR}, s{H_PAR}, 0x1000
s_add_u32 s{H_TAU}, s{H_TAU}, 1
s_cmp_eq_u32 s{H_TAU}, 1
s_cbranch_scc1 L_hloop
s_cmp_gt_u32 s{H_TAU}, 2
s_cbranch_scc1 L_hsteady
s_waitcnt lgkmcnt(0)
s_barrier
s_waitcnt vmcnt(6)
s_barrier
s_branch L_hloop
L_hsteady:
s_waitcnt vmcnt(6) lgkmcnt(0)
s_barrier
s_cmp_le_u32 s{H_TAU}, 26
s_cbranch_scc1 L_hloop
s_waitcnt vmcnt(0)
L_end:
s_endpgm
""")
E('.section .rodata,"a"')
E(".p2align 6")
E(".amdhsa_kernel %s_kernel" % NAME)
E("  .amdhsa_next_free_vgpr 256")
E("  .amdhsa_next_free_sgpr 102")
E("  .amdhsa_accum_offset 256")
E("  .amdhsa_group_segment_fixed_size 0")
E("  .amdhsa_kernarg_size 48")
E("  .amdhsa_user_sgpr_count 2")
E("  .amdhsa_user_sgpr_kernarg_segment_ptr 1")
E("  .amdhsa_system_sgpr_workgroup_id_x 1")
E("  .amdhsa_float_denorm_mode_32 3")
E(".end_amdhsa_kernel")
open(OUT, "w").write("\n".join(L) + "\n")
for n in hz: print(*stats(n))
```
